```python
import torch

def _softmax(x, axis=-1):
    return torch.softmax(x, dim=axis)

def _gelu(x):
    return torch.nn.functional.gelu(x, approximate='tanh')

def _silu(x):
    return torch.nn.functional.silu(x)

def _sigmoid(x):
    return torch.sigmoid(x)

def _layernorm(x, axis=-1, eps=1e-05):
    m = x.mean(dim=axis, keepdim=True)
    v = x.var(dim=axis, keepdim=True, unbiased=False)
    return (x - m) / torch.sqrt(v + eps)

def _scatter_add(tgt, idx, src, axis=0):
    return tgt.clone().index_add_(axis, idx, src)

def _segment_sum(src, seg, n):
    out = torch.zeros((n,) + src.shape[1:], dtype=src.dtype)
    return out.index_add_(0, seg, src)

def _pad(x, pw):
    flat = tuple((v for pair in reversed(pw) for v in pair))
    return torch.nn.functional.pad(x, flat)
kernel_name = 'standalone__dit_adaln_block__diffusion'

def setup_inputs():

    _w = lambda a: (lambda t: t.to(torch.bfloat16) if t.is_floating_point() else t)(torch.as_tensor(a))
    B, N, D = (2, 1024, 768)
    return {'x': _w((lambda *s: torch.randn(*s, dtype=torch.bfloat16) * 0.05)(B, N, D)), 'c': _w((lambda *s: torch.randn(*s, dtype=torch.bfloat16) * 0.2)(B, D)), 'wqkv': _w((lambda *s: torch.randn(*s, dtype=torch.bfloat16) * 0.05)(D, 3 * D)), 'wo': _w((lambda *s: torch.randn(*s, dtype=torch.bfloat16) * 0.05)(D, D)), 'w_mod': _w((lambda *s: torch.randn(*s, dtype=torch.bfloat16) * 0.2)(D, 6 * D))}

def reference(x, c, wqkv, wo, w_mod):
    B, N, D = x.shape
    mod = (_silu(c) @ w_mod).reshape(B, 6, 1, D)
    shift_a, scale_a, gate_a, shift_m, scale_m, gate_m = [mod[:, i] for i in range(6)]
    h = _layernorm(x, axis=-1) * (1 + scale_a) + shift_a
    qkv = h @ wqkv
    q, k, v = (qkv[..., :D].clone(), qkv[..., D:2 * D].clone(), qkv[..., 2 * D:].clone())
    p = _softmax(torch.einsum('bqd,bkd->bqk', q, k) * D ** (-0.5), axis=-1)
    a = torch.einsum('bqk,bkd->bqd', p, v) @ wo
    return x + gate_a * a
```

```python
import re


def vr(n, cnt=1):
    return f"v{n}" if cnt == 1 else f"v[{n}:{n+cnt-1}]"


def ar(n, cnt=1):
    return f"a{n}" if cnt == 1 else f"a[{n}:{n+cnt-1}]"


def sr(n, cnt=1):
    return f"s{n}" if cnt == 1 else f"s[{n}:{n+cnt-1}]"


_REG = re.compile(r"^(-|abs\()?\|?([vas])(?:(\d+)|\[(\d+):(\d+)\])\|?\)?$")


def parse_reg(tok):
    tok = tok.strip()
    if tok in ("vcc",):
        return {("s", "vcc")}
    if tok in ("vcc_lo", "vcc_hi"):
        return {("s", "vcc")}
    if tok == "exec" or tok in ("exec_lo", "exec_hi"):
        return {("s", "exec")}
    if tok == "m0":
        return {("s", "m0")}
    m = _REG.match(tok)
    if not m:
        return set()
    kind = m.group(2)
    if m.group(3) is not None:
        return {(kind, int(m.group(3)))}
    return {(kind, i) for i in range(int(m.group(4)), int(m.group(5)) + 1)}


TRANS = ("v_exp_f32", "v_log_f32", "v_rcp_f32", "v_rsq_f32", "v_sqrt_f32", "v_sin_f32", "v_cos_f32",
         "v_rcp_iflag_f32")


class Ins:
    __slots__ = ("text", "mn", "ops", "mods", "kind", "dst", "src", "srcC", "states", "is_label",
                 "passes", "dpp", "lds", "storedata")

    def __init__(self, text):
        self.text = text
        self.is_label = False
        self.dst = set()
        self.src = set()
        self.srcC = set()
        self.storedata = set()
        self.states = 1
        self.passes = 0
        self.dpp = False
        self.lds = False
        t = text.split(";")[0].strip()
        if not t or t.endswith(":") or t.startswith("."):
            self.kind = "none"
            self.mn = ""
            self.ops = []
            self.states = 0
            self.is_label = t.endswith(":")
            return
        parts = t.split(None, 1)
        self.mn = parts[0]
        rest = parts[1] if len(parts) > 1 else ""
        ops = []
        cur = ""
        depth = 0
        for ch in rest:
            if ch in "[(":
                depth += 1
            if ch in "])":
                depth -= 1
            if ch == "," and depth == 0:
                ops.append(cur.strip())
                cur = ""
            else:
                cur += ch
        if cur.strip():
            ops.append(cur.strip())
        mods = ""
        if ops:
            sp = ops[-1].split(None, 1)
            if len(sp) > 1:
                ops[-1] = sp[0]
                mods = sp[1]
        self.ops = ops
        self.mods = mods
        mn = self.mn
        R = [parse_reg(o) for o in ops]
        if mn == "s_nop":
            self.kind = "nop"
            self.states = int(ops[0], 0) + 1
        elif mn.startswith("v_mfma"):
            self.kind = "mfma"
            self.dst = R[0]
            self.src = R[1] | R[2]
            self.srcC = R[3]
            self.passes = 8 if "32x32" in mn else 4
        elif mn.startswith("v_"):
            self.kind = "valu"
            self.dpp = "_dpp" in mn or "quad_perm" in mods or "row_" in mods
            base = mn.replace("_e32", "").replace("_e64", "").replace("_dpp", "")
            if base.startswith("v_cmp"):
                self.dst = R[0]
                for r in R[1:]:
                    self.src |= r
            elif base in ("v_permlane32_swap_b32", "v_permlane16_swap_b32"):
                self.dst = R[0] | R[1]
                self.src = R[0] | R[1]
            elif base.startswith(("v_add_co", "v_sub_co", "v_addc_co", "v_subb_co")):
                self.dst = R[0] | R[1]
                for r in R[2:]:
                    self.src |= r
            else:
                self.dst = R[0]
                for r in R[1:]:
                    self.src |= r
                if base in ("v_fmac_f32", "v_fmac_f32", "v_dot2c_f32_bf16", "v_writelane_b32") or self.dpp:
                    self.src |= R[0]
                if base.startswith("v_cndmask") and len(ops) == 3:
                    self.src |= {("s", "vcc")}
        elif mn.startswith("buffer_") or mn.startswith("global_"):
            self.kind = "vmem"
            self.lds = " lds" in (" " + mods) or "load_lds" in mn
            if "load" in mn:
                if self.lds:
                    for r in R:
                        self.src |= r
                    self.src |= {("s", "m0")}
                else:
                    self.dst = R[0]
                    for r in R[1:]:
                        self.src |= r
            elif "store" in mn:
                for r in R:
                    self.src |= r
                if mn.startswith("buffer_"):
                    data = R[0]
                else:
                    data = R[1]
                if "x3" in mn or "x4" in mn:
                    self.storedata = data
            elif "atomic" in mn:
                for r in R:
                    self.src |= r
                if "sc0" in mods:
                    self.dst = R[0]
            elif mn.startswith("buffer_inv") or mn.startswith("buffer_wbl2"):
                pass
            else:
                raise ValueError(text)
        elif mn.startswith("ds_"):
            self.kind = "ds"
            if "read" in mn or "bpermute" in mn or "swizzle" in mn or "permute" in mn:
                self.dst = R[0]
                for r in R[1:]:
                    self.src |= r
            else:
                for r in R:
                    self.src |= r
        elif mn.startswith("s_"):
            self.kind = "salu"
            if mn.startswith(("s_cmp", "s_cbranch", "s_branch", "s_waitcnt", "s_barrier", "s_endpgm",
                              "s_sleep", "s_setprio", "s_bitcmp")):
                for r in R:
                    self.src |= r
            elif mn.startswith("s_load") or mn.startswith("s_mem"):
                self.kind = "smem"
                self.dst = R[0]
                for r in R[1:]:
                    self.src |= r
            else:
                self.dst = R[0]
                for r in R[1:]:
                    self.src |= r
                if "saveexec" in mn:
                    self.dst |= {("s", "exec")}
        else:
            raise ValueError("unknown instruction: " + text)


def _vregs(s):
    return {r for r in s if r[0] in "va"}


def _sregs(s):
    return {r for r in s if r[0] == "s"}


def required_states(p, c):
    need = 0
    pv = _vregs(p.dst)
    ps = _sregs(p.dst)
    if p.kind == "valu":
        if c.kind == "mfma" and pv & (c.src | c.srcC):
            need = max(need, 2)
        if c.kind == "vmem" and ps & c.src:
            need = max(need, 5)
        if c.kind == "valu":
            if ps & c.src:
                if c.mn.startswith(("v_readlane", "v_writelane")):
                    need = max(need, 4)
                else:
                    need = max(need, 2)
            if pv & c.src:
                if c.mn.startswith("v_permlane"):
                    need = max(need, 2)
                if c.mn.startswith(("v_readfirstlane", "v_readlane")):
                    need = max(need, 1)
                if c.dpp:
                    need = max(need, 2)
                if p.mn.replace("_e32", "").replace("_e64", "") in TRANS:
                    need = max(need, 1)
                if "op_sel" in p.mods and not p.mn.startswith("v_pk_"):
                    need = max(need, 1)
        if c.kind in ("vmem", "ds") and pv & c.src and p.mn.replace("_e32", "") in TRANS:
            need = max(need, 1)
        if c.kind in ("salu", "smem") and ps & c.src:
            need = max(need, 3)
    elif p.kind == "mfma":
        P = p.passes
        raw = {8: 12, 4: 8}[P]
        if c.kind == "mfma":
            if p.dst & c.srcC:
                if not (p.dst == c.srcC and p.passes == c.passes):
                    need = max(need, {8: 10, 4: 6}[P])
            if p.dst & c.src:
                need = max(need, raw)
            if p.dst & c.dst and p.dst != c.dst:
                need = max(need, raw)
            if p.dst & c.dst and p.dst == c.dst and not (p.dst == c.srcC):
                need = max(need, raw)
        elif c.kind in ("valu", "vmem", "ds"):
            if p.dst & (c.src | c.dst):
                need = max(need, raw)
        if c.kind == "valu" and p.srcC & c.dst:
            need = max(need, {8: 7, 4: 3}[P])
    elif p.kind == "vmem":
        if p.storedata and c.kind in ("valu", "mfma") and p.storedata & c.dst:
            need = max(need, 2)
        elif p.storedata and c.kind in ("vmem", "ds") and p.storedata & c.dst:
            need = max(need, 1)
    elif p.kind == "salu":
        if ("s", "m0") in p.dst and c.kind == "vmem" and c.lds:
            need = max(need, 1)
        if ("s", "exec") in p.dst and c.kind == "valu" and c.dpp:
            need = max(need, 0)
    return need


class Asm:
    def __init__(self):
        self.lines = []
        self.vm = []
        self.lg = []
        self.uid = 0

    def __call__(self, s):
        for ln in s.split("\n"):
            ln = ln.strip()
            if ln:
                self.lines.append(ln)

    def raw(self, s):
        self.lines.append(s)

    def label(self, name):
        self.lines.append(name + ":")

    def newlabel(self, base):
        self.uid += 1
        return f"L_{base}_{self.uid}"

    def vmem(self, s, tag=None):
        self(s)
        self.vm.append(tag)

    def ds(self, s, tag=None):
        self(s)
        self.lg.append(tag)

    def wait_vm(self, tag):
        idx = max((i for i, t in enumerate(self.vm) if t == tag), default=-1)
        if idx < 0:
            return
        n = len(self.vm) - 1 - idx
        self(f"s_waitcnt vmcnt({min(n, 63)})")
        self.vm = self.vm[idx + 1:] if n <= 63 else self.vm[len(self.vm) - 63:]

    def wait_vm_all(self):
        self("s_waitcnt vmcnt(0)")
        self.vm = []

    def wait_lg(self, tag):
        idx = max((i for i, t in enumerate(self.lg) if t == tag), default=-1)
        if idx < 0:
            return
        n = len(self.lg) - 1 - idx
        self(f"s_waitcnt lgkmcnt({min(n, 15)})")
        self.lg = self.lg[idx + 1:] if n <= 15 else self.lg[len(self.lg) - 15:]

    def wait_lg_all(self):
        self("s_waitcnt lgkmcnt(0)")
        self.lg = []

    def reset_counts(self):
        self.vm = []
        self.lg = []

    def finalize(self):
        ins = [Ins(t) for t in self.lines]
        labels = {}
        for idx, x in enumerate(ins):
            if x.is_label:
                name = x.text.strip()[:-1]
                assert name not in labels, name
                labels[name] = idx
        srcs = {}
        for idx, x in enumerate(ins):
            if x.kind == "salu" and x.mn.startswith(("s_cbranch", "s_branch")):
                tgt = x.ops[0]
                assert tgt in labels, tgt
                srcs.setdefault(labels[tgt], []).append(idx)
        pre = [0] * len(ins)
        for _round in range(20):
            changed = False
            for ci, c in enumerate(ins):
                if c.kind in ("none", "nop"):
                    continue
                if not (c.src or c.srcC or c.dst):
                    continue
                need = 0
                stack = [(ci - 1, pre[ci])]
                visited = {}
                while stack:
                    pi, dist = stack.pop()
                    while pi >= 0 and dist < 13:
                        if visited.get(pi, 99) <= dist:
                            break
                        visited[pi] = dist
                        p = ins[pi]
                        if p.kind == "none":
                            if p.is_label:
                                for b in srcs.get(pi, []):
                                    stack.append((b, dist))
                                q = pi - 1
                                while q >= 0 and ins[q].kind == "none" and not ins[q].is_label:
                                    q -= 1
                                if q >= 0 and ins[q].mn in ("s_branch", "s_endpgm"):
                                    break
                            pi -= 1
                            continue
                        if p.kind != "nop":
                            r = required_states(p, c)
                            if r > dist:
                                need = max(need, r - dist)
                        dist += p.states + pre[pi]
                        pi -= 1
                if need:
                    pre[ci] += need
                    changed = True
            if not changed:
                break
        else:
            raise RuntimeError("hazard pass did not converge")
        self.nops_inserted = sum(1 for x in pre if x)
        self.nop_states = sum(pre)
        res = []
        for idx, i in enumerate(ins):
            need = pre[idx]
            while need > 0:
                k = min(need, 16)
                res.append(f"    s_nop {k-1}")
                need -= k
            if i.is_label or i.text.startswith("."):
                res.append(i.text)
            else:
                res.append("    " + i.text)
        return "\n".join(res) + "\n"
```

```python
import sys
import os
sys.path.insert(0, os.path.dirname(os.path.abspath(__file__)))
from asmlib import Asm, vr, ar, sr

NAME = "standalone__dit_adaln_block__diffusion"

WTS_OFF = 0x000000
H_OFF = 0x240000
T_OFF = 0x540000
VT_OFF = 0x840000
P_OFF = 0xB40000
ST_OFF = 0xF40000
MOD_OFF = 0xF60000
TS_OFF = 0xF80000
WS_USED = 0x1000000

QSCALE = 0.036084391824351615 * 1.4426950408889634

S_WG = 2
S_W = 3
S_PTR = 4
SX, SC, SQKV, SWO, SWM, SOUT, SDBG, SWS = 20, 24, 28, 32, 36, 40, 44, 48
S_XCD, S_IDX = 52, 53
S_R, S_CB = 54, 55
S_T0 = 56
S_TS = 70
S_CLK = 86
S_SPIN = 88
S_U0 = 89

V_LANE, V_L16 = 0, 1


def f32hex(x):
    import struct
    return "0x%08x" % struct.unpack("<I", struct.pack("<f", x))[0]


class Gen:
    def __init__(self, stop_after=None, ts=False):
        self.k = Asm()
        self.stop_after = stop_after
        self.ts_on = ts
        self.nts = 0

    def ts(self, i):
        if not self.ts_on:
            return
        k = self.k
        k(f"s_memrealtime {sr(S_CLK,2)}")
        k("s_waitcnt lgkmcnt(0)")
        k.lg = []
        k(f"s_mov_b32 {sr(S_TS+i)}, {sr(S_CLK)}")

    def ts_dump(self):
        if not self.ts_on:
            return
        k = self.k
        k(f"s_lshl_b32 s56, {sr(S_WG)}, 2")
        k(f"s_add_u32 s56, s56, {sr(S_W)}")
        k("s_lshl_b32 s56, s56, 6")
        k(f"s_add_u32 s56, s56, {TS_OFF}")
        k("v_mov_b32 v2, 0")
        for j in range(16):
            k(f"v_writelane_b32 v2, {sr(S_TS+j)}, {j}")
        k(f"v_lshlrev_b32 v3, 2, {vr(V_LANE)}")
        k("s_mov_b64 exec, 0xffff")
        k.vmem(f"buffer_store_dword v2, v3, {sr(SWS,4)}, s56 offen")
        k("s_mov_b64 exec, -1")

    def grid_barrier(self, cidx, expect):
        k = self.k
        k.wait_vm_all()
        k.wait_lg_all()
        k("s_barrier")
        self.arrive_and_wait(cidx, expect)
        k("s_barrier")

    def arrive(self, cidx):
        k = self.k
        skip = k.newlabel("arr")
        k(f"s_cmp_eq_u32 {sr(S_W)}, 0")
        k(f"s_cbranch_scc0 {skip}")
        k("s_mov_b64 exec, 1")
        k("v_mov_b32 v2, 1")
        k("v_mov_b32 v3, 0")
        k(f"buffer_atomic_add v2, v3, {sr(SDBG,4)}, 0 offen offset:{cidx*4}")
        k("s_mov_b64 exec, -1")
        k.label(skip)

    def wait_counter(self, cidx, expect):
        k = self.k
        skip = k.newlabel("wc")
        loop = k.newlabel("wcl")
        done = k.newlabel("wcd")
        k(f"s_cmp_eq_u32 {sr(S_W)}, 0")
        k(f"s_cbranch_scc0 {skip}")
        k("s_mov_b64 exec, 1")
        k("v_mov_b32 v3, 0")
        k(f"s_mov_b32 {sr(S_SPIN)}, 0")
        k.label(loop)
        k(f"buffer_load_dword v2, v3, {sr(SDBG,4)}, 0 offen offset:{cidx*4} sc1")
        k("s_waitcnt vmcnt(0)")
        k("v_readfirstlane_b32 s56, v2")
        k(f"s_cmp_ge_u32 s56, {expect}")
        k(f"s_cbranch_scc1 {done}")
        k(f"s_add_u32 {sr(S_SPIN)}, {sr(S_SPIN)}, 1")
        k(f"s_cmp_lt_u32 {sr(S_SPIN)}, 0x100000")
        k(f"s_cbranch_scc1 {loop}")
        k.label(done)
        k("s_mov_b64 exec, -1")
        k.label(skip)
        k.vm = []

    def arrive_and_wait(self, cidx, expect):
        self.arrive(cidx)
        self.wait_counter(cidx, expect)

    def srd(self, s, ptr, nbytes):
        k = self.k
        k(f"s_mov_b32 {sr(s)}, {sr(ptr)}")
        k(f"s_mov_b32 {sr(s+1)}, {sr(ptr+1)}")
        k(f"s_mov_b32 {sr(s+2)}, {nbytes}")
        k(f"s_mov_b32 {sr(s+3)}, 0x20000")

    def prologue(self):
        k = self.k
        k(f"s_cmp_ge_u32 {sr(S_WG)}, 256")
        k("s_cbranch_scc1 L_end")
        k(f"s_load_dwordx16 {sr(S_PTR,16)}, s[0:1], 0")
        k("v_lshrrev_b32 v2, 6, v0")
        k(f"v_and_b32 {vr(V_LANE)}, 63, v0")
        k(f"v_readfirstlane_b32 {sr(S_W)}, v2")
        k(f"v_lshlrev_b32 {vr(V_L16)}, 4, {vr(V_LANE)}")
        k(f"s_and_b32 {sr(S_XCD)}, {sr(S_WG)}, 7")
        k(f"s_lshr_b32 {sr(S_IDX)}, {sr(S_WG)}, 3")
        k(f"s_lshr_b32 s56, {sr(S_XCD)}, 1")
        k("s_lshl_b32 s56, s56, 2")
        k(f"s_and_b32 s57, {sr(S_IDX)}, 3")
        k(f"s_add_u32 {sr(S_R)}, s56, s57")
        k(f"s_and_b32 s56, {sr(S_XCD)}, 1")
        k("s_lshl_b32 s56, s56, 3")
        k(f"s_lshr_b32 s57, {sr(S_IDX)}, 2")
        k(f"s_add_u32 {sr(S_CB)}, s56, s57")
        k("s_waitcnt lgkmcnt(0)")
        self.srd(SX, 4, 2 * 1024 * 768 * 2)
        self.srd(SC, 6, 2 * 768 * 2)
        self.srd(SQKV, 8, 768 * 2304 * 2)
        self.srd(SWO, 10, 768 * 768 * 2)
        self.srd(SWM, 12, 768 * 4608 * 2)
        self.srd(SOUT, 14, 2 * 1024 * 768 * 2)
        self.srd(SDBG, 16, 256)
        self.srd(SWS, 18, WS_USED)
        self.ts(0)

    def phase_a_gemm(self, mat):
        k = self.k
        S_CBM, S_IB, S_A0, S_B0, S_M0A, S_M0B, S_OA, S_OB, S_II, S_KH = range(57, 67)
        k(f"s_and_b32 s56, {sr(S_XCD)}, 1")
        k("s_lshl_b32 s56, s56, 2")
        k(f"s_and_b32 {sr(S_CBM)}, {sr(S_IDX)}, 3")
        k(f"s_add_u32 {sr(S_CBM)}, {sr(S_CBM)}, s56")
        k(f"s_lshr_b32 s56, {sr(S_XCD)}, 1")
        k("s_and_b32 s56, s56, 1")
        k("s_mul_i32 s56, s56, 6")
        k(f"s_lshr_b32 {sr(S_IB)}, {sr(S_IDX)}, 2")
        k(f"s_add_u32 {sr(S_IB)}, {sr(S_IB)}, s56")
        k(f"s_and_b32 {sr(S_II)}, {sr(S_W)}, 1")
        k(f"s_lshr_b32 {sr(S_KH)}, {sr(S_W)}, 1")
        k(f"s_mul_i32 {sr(S_A0)}, {sr(S_IB)}, {64*4608}")
        k(f"s_mul_i32 s56, {sr(S_W)}, {16*4608}")
        k(f"s_add_u32 {sr(S_A0)}, {sr(S_A0)}, s56")
        if mat:
            k(f"s_add_u32 {sr(S_A0)}, {sr(S_A0)}, 3072")
        VA, VB = 2, 4
        k(f"v_lshrrev_b32 v8, 3, {vr(V_LANE)}")
        k(f"v_and_b32 v9, 7, {vr(V_LANE)}")
        k(f"v_lshrrev_b32 v10, 4, {vr(V_LANE)}")
        k("s_mov_b32 s56, 4608")
        k("v_mul_lo_u32 v11, v8, s56")
        k("v_xor_b32 v12, v9, v10")
        k("v_xor_b32 v13, 4, v12")
        k("v_lshl_add_u32 v12, v12, 4, v11")
        k("v_lshl_add_u32 v13, v13, 4, v11")
        k(f"v_add_u32 {vr(VA)}, {sr(S_A0)}, v12")
        k(f"s_add_u32 s56, {sr(S_A0)}, {8*4608}")
        k(f"v_add_u32 {vr(VA+1)}, s56, v13")
        if mat == 0:
            k(f"s_mul_i32 {sr(S_B0)}, {sr(S_CBM)}, {96*4608}")
            k(f"s_mul_i32 s56, {sr(S_W)}, {24*4608}")
            k(f"s_add_u32 {sr(S_B0)}, {sr(S_B0)}, s56")
            k(f"s_add_u32 {sr(S_B0)}, {sr(S_B0)}, 1536")
            k(f"s_cmp_eq_u32 {sr(S_II)}, 0")
            k("s_cselect_b64 vcc, -1, 0")
            k("v_cndmask_b32 v14, v13, v12, vcc")
            k("v_cndmask_b32 v15, v12, v13, vcc")
            k(f"v_add_u32 {vr(VB)}, {sr(S_B0)}, v14")
            k(f"s_add_u32 s56, {sr(S_B0)}, {8*4608}")
            k(f"v_add_u32 {vr(VB+1)}, s56, v15")
            k(f"s_add_u32 s56, {sr(S_B0)}, {16*4608}")
            k(f"v_add_u32 {vr(VB+2)}, s56, v14")
        else:
            k(f"v_lshrrev_b32 v14, 2, {vr(V_LANE)}")
            k("s_mov_b32 s56, 1536")
            k("v_mul_lo_u32 v14, v14, s56")
            k(f"v_and_b32 v15, 3, {vr(V_LANE)}")
            k("v_lshl_add_u32 v14, v15, 4, v14")
            k(f"s_mul_i32 {sr(S_B0)}, {sr(S_CBM)}, 192")
            for i in range(3):
                k(f"s_mul_i32 s56, {sr(S_W)}, 3")
                k(f"s_add_u32 s56, s56, {i}")
                k("s_lshr_b32 s67, s56, 2")
                k("s_and_b32 s56, s56, 3")
                k(f"s_mul_i32 s56, s56, {16*1536}")
                k("s_lshl_b32 s67, s67, 6")
                k("s_add_u32 s56, s56, s67")
                k(f"s_add_u32 s56, s56, {sr(S_B0)}")
                k(f"v_add_u32 {vr(VB+i)}, s56, v14")
        k(f"s_lshl_b32 {sr(S_M0A)}, {sr(S_W)}, 11")
        k(f"s_mul_i32 {sr(S_M0B)}, {sr(S_W)}, 3072")
        k(f"s_add_u32 {sr(S_M0B)}, {sr(S_M0B)}, 8192")
        SB = SQKV if mat == 0 else SWO
        bstride = 128 if mat == 0 else 64 * 1536

        def issue(st):
            sl = st % 7
            k(f"s_mov_b32 {sr(S_OA)}, {st*128}")
            if mat:
                k(f"s_mov_b32 {sr(S_OB)}, {st*bstride}")
            ob = S_OB if mat else S_OA
            for i in range(2):
                k(f"s_add_u32 m0, {sr(S_M0A)}, {sl*20480 + i*1024}")
                k.vmem(f"buffer_load_dwordx4 {vr(VA+i)}, {sr(SQKV,4)}, {sr(S_OA)} offen lds", ("A", st))
            for i in range(3):
                k(f"s_add_u32 m0, {sr(S_M0B)}, {sl*20480 + i*1024}")
                k.vmem(f"buffer_load_dwordx4 {vr(VB+i)}, {sr(SB,4)}, {sr(ob)} offen lds", ("A", st))

        for st in range(7):
            issue(st)
        RA, RB = 8, 14
        k(f"v_and_b32 v20, 31, {vr(V_LANE)}")
        k(f"v_lshrrev_b32 v21, 5, {vr(V_LANE)}")
        k("v_lshrrev_b32 v22, 1, v20")
        k("v_and_b32 v22, 7, v22")
        k(f"s_lshl_b32 s56, {sr(S_KH)}, 2")
        k("v_add_u32 v23, s56, v21")
        for kk in range(2):
            k(f"v_add_u32 v24, {2*kk}, v23")
            k("v_xor_b32 v24, v24, v22")
            k("v_lshlrev_b32 v24, 4, v24")
            k("v_lshl_add_u32 v24, v20, 7, v24")
            k(f"s_lshl_b32 s56, {sr(S_II)}, 12")
            k(f"v_add_u32 {vr(RA+kk*3)}, s56, v24")
            k(f"v_add_u32 {vr(RA+kk*3+1)}, 61440, {vr(RA+kk*3)}")
            k(f"v_add_u32 {vr(RA+kk*3+2)}, 122880, {vr(RA+kk*3)}")
            if mat == 0:
                k(f"v_add_u32 {vr(RB+kk*3)}, 8192, v24")
                k(f"v_add_u32 {vr(RB+kk*3+1)}, {8192+61440}, v24")
                k(f"v_add_u32 {vr(RB+kk*3+2)}, {8192+122880}, v24")
        if mat:
            k(f"v_lshrrev_b32 v24, 2, {vr(V_LANE)}")
            k("v_and_b32 v24, 3, v24")
            k("v_lshl_add_u32 v24, v21, 3, v24")
            k("v_lshlrev_b32 v24, 6, v24")
            k(f"v_lshrrev_b32 v25, 4, {vr(V_LANE)}")
            k("v_and_b32 v25, 1, v25")
            k("v_lshl_add_u32 v24, v25, 5, v24")
            k(f"v_and_b32 v25, 3, {vr(V_LANE)}")
            k("v_lshl_add_u32 v24, v25, 3, v24")
            k(f"s_lshl_b32 s56, {sr(S_KH)}, 11")
            k("s_add_u32 s56, s56, 8192")
            k(f"v_add_u32 {vr(RB)}, s56, v24")
            k(f"v_add_u32 {vr(RB+1)}, 61440, {vr(RB)}")
            k(f"v_add_u32 {vr(RB+2)}, 122880, {vr(RB)}")
        ACC, FA, FB = 32, 80, 88
        for st in range(12):
            sl = st % 7
            win, so = sl // 3, (sl % 3) * 20480
            k.wait_vm(("A", st))
            k("s_barrier")
            if st >= 1 and st + 6 < 12:
                issue(st + 6)
            for kk in range(2):
                k.ds(f"ds_read_b128 {vr(FA+4*kk,4)}, {vr(RA+kk*3+win)} offset:{so}", ("r", kk))
                for j in range(3):
                    d = FB + 12 * kk + 4 * j
                    if mat == 0:
                        k.ds(f"ds_read_b128 {vr(d,4)}, {vr(RB+kk*3+win)} offset:{so+j*4096}", ("r", kk))
                    else:
                        for t in range(2):
                            k.ds(f"ds_read_b64_tr_b16 {vr(d+2*t,2)}, {vr(RB+win)} "
                                 f"offset:{so+j*4096+(16*kk+4*t)*64}", ("r", kk))
            for kk in range(2):
                k.wait_lg(("r", kk))
                for j in range(3):
                    c = "0" if (st == 0 and kk == 0) else vr(ACC+16*j, 16)
                    k(f"v_mfma_f32_32x32x16_bf16 {vr(ACC+16*j,16)}, {vr(FA+4*kk,4)}, "
                      f"{vr(FB+12*kk+4*j,4)}, {c}")
        self.ts(1)
        XA, XR = 20, 21
        k(f"s_mul_i32 s56, {sr(S_W)}, 6144")
        k(f"v_add_u32 {vr(XA)}, s56, {vr(V_L16)}")
        k(f"s_xor_b32 s56, {sr(S_W)}, 2")
        k("s_mul_i32 s56, s56, 6144")
        k(f"v_add_u32 {vr(XR)}, s56, {vr(V_L16)}")
        k(f"s_add_u32 s56, {sr(S_CBM)}, {mat*8}")
        k("s_mul_i32 s56, s56, 48")
        k(f"s_lshl_b32 s67, {sr(S_IB)}, 2")
        k("s_add_u32 s56, s56, s67")
        k(f"s_lshl_b32 s67, {sr(S_II)}, 1")
        k("s_add_u32 s56, s56, s67")
        k(f"s_add_u32 s56, s56, {sr(S_KH)}")
        k("s_mul_i32 s68, s56, 3072")
        if WTS_OFF:
            k(f"s_add_u32 s68, s68, {WTS_OFF}")
        l1 = k.newlabel("akh1")
        l2 = k.newlabel("aend")
        k(f"s_cmp_eq_u32 {sr(S_KH)}, 0")
        k(f"s_cbranch_scc0 {l1}")
        for kh in range(2):
            if kh == 1:
                k.label(l1)
                k.reset_counts()
            send = 8 if kh == 0 else 0
            keep = 0 if kh == 0 else 8
            for j in range(3):
                for q in range(2):
                    k.ds(f"ds_write_b128 {vr(XA)}, {vr(ACC+16*j+send+4*q,4)} offset:{(j*2+q)*1024}")
            k.wait_lg_all()
            k("s_barrier")
            RD = 88
            for j in range(3):
                for q in range(2):
                    k.ds(f"ds_read_b128 {vr(RD+8*j+4*q,4)}, {vr(XR)} offset:{(j*2+q)*1024}")
            k.wait_lg_all()
            for j in range(3):
                for e in range(8):
                    k(f"v_add_f32 {vr(RD+8*j+e)}, {vr(ACC+16*j+keep+e)}, {vr(RD+8*j+e)}")
                for e in range(4):
                    k(f"v_cvt_pk_bf16_f32 {vr(RD+8*j+e)}, {vr(RD+8*j+2*e)}, {vr(RD+8*j+2*e+1)}")
                k.vmem(f"buffer_store_dwordx4 {vr(RD+8*j,4)}, {vr(V_L16)}, {sr(SWS,4)}, s68 offen "
                       f"offset:{j*1024} sc1")
            if kh == 0:
                k(f"s_branch {l2}")
        k.label(l2)
        self.ts(2)

    def phase_a_ln(self):
        k = self.k
        S_G, S_B, S_O, S_ROW = 57, 58, 59, 60
        k(f"s_lshl_b32 {sr(S_G)}, {sr(S_XCD)}, 3")
        k(f"s_add_u32 {sr(S_G)}, {sr(S_G)}, {sr(S_IDX)}")
        k(f"s_sub_u32 {sr(S_G)}, {sr(S_G)}, 24")
        k(f"s_lshr_b32 {sr(S_B)}, {sr(S_G)}, 5")
        VT = 2
        k(f"s_lshl_b32 s56, {sr(S_W)}, 6")
        k(f"v_add_u32 {vr(VT)}, s56, {vr(V_LANE)}")
        VC = 4
        k(f"v_lshlrev_b32 v3, 1, {vr(VT)}")
        for b in range(2):
            for i in range(3):
                k.vmem(f"buffer_load_ushort {vr(VC+b*3+i)}, v3, {sr(SC,4)}, 0 offen offset:{b*1536+i*512}", "c")
        VW = 64
        k("s_mov_b32 s56, 57")
        k(f"v_mul_lo_u32 v10, {vr(V_LANE)}, s56")
        k("v_lshrrev_b32 v10, 9, v10")
        k("v_mul_u32_u24 v11, 9, v10")
        k(f"v_sub_u32 v11, {vr(V_LANE)}, v11")
        k("s_mov_b32 s56, 9216")
        k("v_mul_lo_u32 v12, v10, s56")
        k("v_lshl_add_u32 v12, v11, 3, v12")
        k(f"s_mul_i32 s56, {sr(S_G)}, 72")
        k(f"s_mul_i32 s61, {sr(S_W)}, {7*9216}")
        k("s_add_u32 s56, s56, s61")
        k("v_add_u32 v12, s56, v12")
        k(f"v_cmp_eq_u32 vcc, 63, {vr(V_LANE)}")
        k("v_mov_b32 v13, 0x40000000")
        k("v_cndmask_b32 v12, v12, v13, vcc")
        for i in range(28):
            k(f"s_mov_b32 {sr(S_O)}, {i*28*9216}")
            k.vmem(f"buffer_load_dwordx2 {vr(VW+2*i,2)}, v12, {sr(SWM,4)}, {sr(S_O)} offen", ("w", i))
        VX = 128
        k(f"s_lshl_b32 {sr(S_ROW)}, {sr(S_G)}, 5")
        k(f"s_lshl_b32 s56, {sr(S_W)}, 3")
        k(f"s_add_u32 {sr(S_ROW)}, {sr(S_ROW)}, s56")
        k(f"s_mul_i32 {sr(S_ROW)}, {sr(S_ROW)}, 1536")
        k(f"v_lshlrev_b32 v14, 3, {vr(V_LANE)}")
        for i in range(8):
            k(f"s_add_u32 {sr(S_O)}, {sr(S_ROW)}, {i*1536}")
            for q in range(3):
                k.vmem(f"buffer_load_dwordx2 {vr(VX+6*i+2*q,2)}, v14, {sr(SX,4)}, {sr(S_O)} offen "
                       f"offset:{q*512}", ("x", i))
        k.wait_vm("c")
        L2E = f32hex(-1.4426950408889634)
        k(f"s_mov_b32 s56, {L2E}")
        for n in range(6):
            c = VC + n
            k(f"v_lshlrev_b32 {vr(c)}, 16, {vr(c)}")
        for n in range(6):
            k(f"v_mul_f32 {vr(16+n)}, s56, {vr(VC+n)}")
        for n in range(6):
            k(f"v_exp_f32 {vr(16+n)}, {vr(16+n)}")
        for n in range(6):
            k(f"v_add_f32 {vr(16+n)}, 1.0, {vr(16+n)}")
        for n in range(6):
            k(f"v_rcp_f32 {vr(16+n)}, {vr(16+n)}")
        for i in range(3):
            k(f"v_mul_f32 {vr(22+2*i)}, {vr(VC+i)}, {vr(16+i)}")
            k(f"v_mul_f32 {vr(23+2*i)}, {vr(VC+3+i)}, {vr(16+3+i)}")
        k(f"v_lshlrev_b32 v3, 3, {vr(VT)}")
        for i in range(3):
            k.ds(f"ds_write_b64 v3, {vr(22+2*i,2)} offset:{i*2048}")
        k("v_mov_b32 v28, 0")
        k("v_mov_b32 v29, 0")
        k(f"v_cmp_gt_u32 vcc, 16, {vr(VT)}")
        k("s_and_saveexec_b64 s[62:63], vcc")
        k.ds("ds_write_b64 v3, v[28:29] offset:6144")
        k("s_mov_b64 exec, s[62:63]")
        k.wait_lg_all()
        k("s_barrier")
        AC = 32
        for e in range(8):
            k(f"v_mov_b32 {vr(AC+e)}, 0")
        k(f"s_mul_i32 s56, {sr(S_W)}, 56")
        k("v_lshl_add_u32 v15, v10, 3, s56")
        SV = 40
        TM = 48
        for i in range(min(4, 28)):
            k.ds(f"ds_read_b64 {vr(SV+2*(i%4),2)}, v15 offset:{i*224}", ("s", i))
        for i in range(28):
            k.wait_vm(("w", i))
            k(f"v_lshlrev_b32 {vr(TM)}, 16, {vr(VW+2*i)}")
            k(f"v_and_b32 {vr(TM+1)}, 0xffff0000, {vr(VW+2*i)}")
            k(f"v_lshlrev_b32 {vr(TM+2)}, 16, {vr(VW+2*i+1)}")
            k(f"v_and_b32 {vr(TM+3)}, 0xffff0000, {vr(VW+2*i+1)}")
            k.wait_lg(("s", i))
            s = vr(SV + 2 * (i % 4), 2)
            k(f"v_pk_fma_f32 {vr(AC,2)}, {vr(TM,2)}, {s}, {vr(AC,2)} op_sel_hi:[0,1,1]")
            k(f"v_pk_fma_f32 {vr(AC+2,2)}, {vr(TM,2)}, {s}, {vr(AC+2,2)} op_sel:[1,0,0] op_sel_hi:[1,1,1]")
            k(f"v_pk_fma_f32 {vr(AC+4,2)}, {vr(TM+2,2)}, {s}, {vr(AC+4,2)} op_sel_hi:[0,1,1]")
            k(f"v_pk_fma_f32 {vr(AC+6,2)}, {vr(TM+2,2)}, {s}, {vr(AC+6,2)} op_sel:[1,0,0] op_sel_hi:[1,1,1]")
            if i + 4 < 28:
                k.ds(f"ds_read_b64 {vr(SV+2*(i%4),2)}, v15 offset:{(i+4)*224}", ("s", i + 4))
        RED = 8192
        k(f"v_lshlrev_b32 v3, 5, {vr(VT)}")
        k.ds(f"ds_write_b128 v3, {vr(AC,4)} offset:{RED}")
        k.ds(f"ds_write_b128 v3, {vr(AC+4,4)} offset:{RED+16}")
        k.wait_lg_all()
        k("s_barrier")
        skip = k.newlabel("red")
        k(f"s_cmp_eq_u32 {sr(S_W)}, 0")
        k(f"s_cbranch_scc0 {skip}")
        k(f"v_cmp_gt_u32 vcc, 36, {vr(V_LANE)}")
        k("s_and_saveexec_b64 s[62:63], vcc")
        k(f"v_lshrrev_b32 v16, 2, {vr(V_LANE)}")
        k(f"v_and_b32 v17, 3, {vr(V_LANE)}")
        k("v_lshlrev_b32 v16, 5, v16")
        k("v_lshl_add_u32 v16, v17, 3, v16")
        RR = 64
        n = 0
        for w in range(4):
            for j in range(7):
                k.ds(f"ds_read_b64 {vr(RR+2*n,2)}, v16 offset:{RED+(w*64+j*9)*32}", ("rr", n // 14))
                n += 1
                if n == 14:
                    k.wait_lg(("rr", 0))
        k.wait_lg_all()
        for step in (14, 7):
            pass
        cnt = 28
        cur = list(range(28))
        while len(cur) > 1:
            nxt = []
            for a in range(0, len(cur) - 1, 2):
                k(f"v_pk_add_f32 {vr(RR+2*cur[a],2)}, {vr(RR+2*cur[a],2)}, {vr(RR+2*cur[a+1],2)}")
                nxt.append(cur[a])
            if len(cur) % 2:
                nxt.append(cur[-1])
            cur = nxt
        k(f"s_mul_i32 s56, {sr(S_G)}, 144")
        k(f"s_add_u32 s56, s56, {MOD_OFF}")
        k(f"v_lshlrev_b32 v16, 2, {vr(V_LANE)}")
        k.vmem(f"buffer_store_dword {vr(RR)}, v16, {sr(SWS,4)}, s56 offen sc1")
        k(f"s_add_u32 s56, s56, {2304*4}")
        k.vmem(f"buffer_store_dword {vr(RR+1)}, v16, {sr(SWS,4)}, s56 offen sc1")
        k("s_mov_b64 exec, s[62:63]")
        k.wait_vm_all()
        self.arrive(1)
        k.label(skip)
        self.ts(1)
        k.vm = [("x", i) for i in range(8) for _ in range(3)]
        VY = 160 + 16
        VY = 64
        ymap = [176 + n for n in range(80)] + [16 + n for n in range(16)]

        def Y(i, e):
            return ymap[i * 12 + e]
        k.wait_vm_all()
        for i in range(8):
            for q in range(3):
                for d in range(2):
                    src = VX + 6 * i + 2 * q + d
                    k(f"v_lshlrev_b32 {vr(Y(i,4*q+2*d))}, 16, {vr(src)}")
                    k(f"v_and_b32 {vr(Y(i,4*q+2*d+1))}, 0xffff0000, {vr(src)}")
        SM = 40
        for i in range(8):
            k(f"v_add_f32 {vr(SM+i)}, {vr(Y(i,0))}, {vr(Y(i,1))}")
        for e in range(2, 12):
            for i in range(8):
                k(f"v_add_f32 {vr(SM+i)}, {vr(SM+i)}, {vr(Y(i,e))}")
        SS = 89

        def wave_sum(base, sdst):
            for mod in ("quad_perm:[1,0,3,2] row_mask:0xf bank_mask:0xf",
                        "quad_perm:[2,3,0,1] row_mask:0xf bank_mask:0xf",
                        "row_half_mirror row_mask:0xf bank_mask:0xf",
                        "row_mirror row_mask:0xf bank_mask:0xf",
                        "row_bcast:15 row_mask:0xa bank_mask:0xf",
                        "row_bcast:31 row_mask:0xc bank_mask:0xf"):
                for i in range(8):
                    k(f"v_add_f32_dpp {vr(base+i)}, {vr(base+i)}, {vr(base+i)} {mod}")
            for i in range(8):
                k(f"v_readlane_b32 {sr(sdst+i)}, {vr(base+i)}, 63")
        wave_sum(SM, SS)
        k(f"s_mov_b32 s56, {f32hex(1.0/768)}")
        for i in range(8):
            k(f"v_mov_b32 {vr(SM+i)}, {sr(SS+i)}")
        for i in range(8):
            k(f"v_mul_f32 {vr(SM+i)}, s56, {vr(SM+i)}")
        for e in range(12):
            for i in range(8):
                k(f"v_sub_f32 {vr(Y(i,e))}, {vr(Y(i,e))}, {vr(SM+i)}")
        SQ = 48
        for i in range(8):
            k(f"v_mul_f32 {vr(SQ+i)}, {vr(Y(i,0))}, {vr(Y(i,0))}")
        for e in range(1, 12):
            for i in range(8):
                k(f"v_fmac_f32 {vr(SQ+i)}, {vr(Y(i,e))}, {vr(Y(i,e))}")
        wave_sum(SQ, SS)
        k(f"s_mov_b32 s61, {f32hex(1e-5)}")
        for i in range(8):
            k(f"v_mov_b32 {vr(SQ+i)}, {sr(SS+i)}")
        k("v_mov_b32 v56, s61")
        for i in range(8):
            k(f"v_fma_f32 {vr(SQ+i)}, {vr(SQ+i)}, s56, v56")
        for i in range(8):
            k(f"v_rsq_f32 {vr(SQ+i)}, {vr(SQ+i)}")
        for e in range(12):
            for i in range(8):
                k(f"v_mul_f32 {vr(Y(i,e))}, {vr(Y(i,e))}, {vr(SQ+i)}")
        self.ts(2)
        self.wait_counter(1, 64)
        k("s_barrier")
        G = 64
        k(f"s_mul_i32 s56, {sr(S_B)}, {2304*4}")
        k(f"s_add_u32 s56, s56, {MOD_OFF}")
        for q in range(3):
            k.vmem(f"buffer_load_dwordx4 {vr(G+12+4*q,4)}, {vr(V_L16)}, {sr(SWS,4)}, s56 offen "
                   f"offset:{q*1024} sc1", "g")
        k("s_add_u32 s56, s56, 3072")
        for q in range(3):
            k.vmem(f"buffer_load_dwordx4 {vr(G+4*q,4)}, {vr(V_L16)}, {sr(SWS,4)}, s56 offen "
                   f"offset:{q*1024} sc1", "g")
        HIM = 16384
        k(f"v_lshrrev_b32 v88, 2, {vr(V_LANE)}")
        k(f"v_and_b32 v89, 1, {vr(V_LANE)}")
        k("v_and_b32 v90, 3, v88")
        k("v_lshl_or_b32 v90, v89, 2, v90")
        k(f"s_lshl_b32 s61, {sr(S_W)}, 3")
        k("v_lshl_add_u32 v91, v89, 5, s61")
        k(f"v_lshrrev_b32 v92, 1, {vr(V_LANE)}")
        k("v_and_b32 v92, 1, v92")
        k("v_lshlrev_b32 v92, 3, v92")
        k("v_lshl_add_u32 v92, v88, 10, v92")
        for i in range(8):
            k(f"v_add_u32 v93, {i}, v91")
            k("v_xor_b32 v93, v93, v90")
            k(f"v_lshl_add_u32 {vr(96+i)}, v93, 4, v92")
        k.wait_vm("g")
        for e in range(12):
            k(f"v_add_f32 {vr(G+e)}, 1.0, {vr(G+e)}")
        for i in range(8):
            for e in range(12):
                k(f"v_fma_f32 {vr(Y(i,e))}, {vr(Y(i,e))}, {vr(G+e)}, {vr(G+12+e)}")
            for q in range(3):
                k(f"v_cvt_pk_bf16_f32 {vr(104+2*q)}, {vr(Y(i,4*q))}, {vr(Y(i,4*q+1))}")
                k(f"v_cvt_pk_bf16_f32 {vr(105+2*q)}, {vr(Y(i,4*q+2))}, {vr(Y(i,4*q+3))}")
                k.ds(f"ds_write_b64 {vr(96+i)}, {vr(104+2*q,2)} offset:{HIM+q*16384}")
            k.wait_lg_all()
        k("s_barrier")
        k(f"v_lshrrev_b32 v88, 5, {vr(V_LANE)}")
        k("v_lshlrev_b32 v88, 2, v88")
        for sm in range(4):
            k(f"v_or_b32 v89, {sm}, v88")
            k(f"v_xor_b32 v89, v89, {vr(V_LANE)}")
            k(f"v_lshlrev_b32 {vr(90+sm)}, 4, v89")
        k(f"s_mul_i32 s56, {sr(S_W)}, 12288")
        for sm in range(4):
            k(f"v_add_u32 {vr(90+sm)}, s56, {vr(90+sm)}")
        RB = 112
        for n in range(12):
            k.ds(f"ds_read_b128 {vr(RB+4*n,4)}, {vr(90+(n&3))} offset:{HIM+n*1024}", ("hb", n))
        k(f"s_mul_i32 s56, {sr(S_G)}, 48")
        k(f"s_mul_i32 s61, {sr(S_W)}, 12")
        k("s_add_u32 s56, s56, s61")
        k("s_lshl_b32 s56, s56, 10")
        k(f"s_add_u32 s56, s56, {H_OFF}")
        for n in range(12):
            k.wait_lg(("hb", n))
            if n and n % 4 == 0:
                k("s_add_u32 s56, s56, 4096")
            k.vmem(f"buffer_store_dwordx4 {vr(RB+4*n,4)}, {vr(V_L16)}, {sr(SWS,4)}, s56 offen "
                   f"offset:{(n%4)*1024} sc1")
        self.ts(3)

    def phase_b(self):
        k = self.k
        S_HB, S_WB, S_M0, S_O = 57, 58, 59, 60
        k(f"s_lshl_b32 s56, {sr(S_R)}, 2")
        k(f"s_add_u32 s56, s56, {sr(S_W)}")
        k(f"s_mul_i32 {sr(S_HB)}, s56, 49152")
        k(f"s_add_u32 {sr(S_HB)}, {sr(S_HB)}, {H_OFF}")
        k(f"s_mul_i32 {sr(S_WB)}, {sr(S_CB)}, 147456")
        k(f"s_mul_i32 {sr(S_M0)}, {sr(S_W)}, 3072")
        k(f"s_add_u32 {sr(S_WB)}, {sr(S_WB)}, {sr(S_M0)}")
        if WTS_OFF:
            k(f"s_add_u32 {sr(S_WB)}, {sr(S_WB)}, {WTS_OFF}")

        def issue(c):
            k(f"s_add_u32 {sr(S_O)}, {sr(S_WB)}, {c*12288}")
            k(f"s_add_u32 m0, {sr(S_M0)}, {c*12288}")
            for i in range(3):
                k.vmem(f"buffer_load_dwordx4 {vr(V_L16)}, {sr(SWS,4)}, {sr(S_O)} offen offset:{i*1024} sc1 lds",
                       ("B", c))
            k(f"s_add_u32 {sr(S_O)}, {sr(S_HB)}, {c*4096}")
            for i in range(4):
                k.vmem(f"buffer_load_dwordx4 {ar(16*c+4*i,4)}, {vr(V_L16)}, {sr(SWS,4)}, {sr(S_O)} offen "
                       f"offset:{i*1024} sc1", ("B", c))
        for c in range(9):
            issue(c)
        RW = 2
        k(f"v_mov_b32 {vr(RW)}, {vr(V_L16)}")
        k(f"v_add_u32 {vr(RW+1)}, 0x10000, {vr(V_L16)}")
        k(f"v_add_u32 {vr(RW+2)}, 0x20000, {vr(V_L16)}")
        ACC, FR = 32, 80
        lv = k.newlabel("bV")
        le = k.newlabel("bE")
        k(f"s_cmp_lt_u32 {sr(S_CB)}, 8")
        k(f"s_cbranch_scc0 {lv}")
        saved = (list(k.vm), list(k.lg))
        for part in range(2):
            if part == 1:
                k.label(lv)
                k.vm, k.lg = list(saved[0]), list(saved[1])
            for c in range(12):
                k.wait_vm(("B", c))
                k("s_barrier")
                if c + 9 < 12:
                    issue(c + 9)
                for kk in range(4):
                    for j in range(3):
                        f = 12 * c + 3 * kk + j
                        k.ds(f"ds_read_b128 {vr(FR+12*kk+4*j,4)}, {vr(RW+f//64)} offset:{(f%64)*1024}", ("r", kk))
                for kk in range(4):
                    k.wait_lg(("r", kk))
                    ks = 4 * c + kk
                    for j in range(3):
                        cc = "0" if ks == 0 else vr(ACC + 16 * j, 16)
                        if part == 0:
                            k(f"v_mfma_f32_32x32x16_bf16 {vr(ACC+16*j,16)}, {vr(FR+12*kk+4*j,4)}, {ar(4*ks,4)}, {cc}")
                        else:
                            k(f"v_mfma_f32_32x32x16_bf16 {vr(ACC+16*j,16)}, {ar(4*ks,4)}, {vr(FR+12*kk+4*j,4)}, {cc}")
            self.ts(5)
            if part == 0:
                k(f"s_lshl_b32 s56, {sr(S_R)}, 2")
                k(f"s_add_u32 s56, s56, {sr(S_W)}")
                k("s_mul_i32 s56, s56, 48")
                k(f"s_mul_i32 s61, {sr(S_CB)}, 6")
                k("s_add_u32 s56, s56, s61")
                k("s_lshl_b32 s56, s56, 10")
                k(f"s_add_u32 s56, s56, {T_OFF}")
                k(f"s_mov_b32 s61, {f32hex(QSCALE)}")
                for j in range(3):
                    for e in range(16):
                        k(f"v_mul_f32 {vr(ACC+16*j+e)}, s61, {vr(ACC+16*j+e)}")
            else:
                k(f"s_lshr_b32 s56, {sr(S_R)}, 3")
                k("s_mul_i32 s56, s56, 24")
                k(f"s_sub_u32 s61, {sr(S_CB)}, 8")
                k("s_mul_i32 s61, s61, 3")
                k("s_add_u32 s56, s56, s61")
                k("s_lshl_b32 s56, s56, 6")
                k(f"s_and_b32 s61, {sr(S_R)}, 7")
                k("s_lshl_b32 s61, s61, 3")
                k("s_add_u32 s56, s56, s61")
                k(f"s_lshl_b32 s61, {sr(S_W)}, 1")
                k("s_add_u32 s56, s56, s61")
                k("s_lshl_b32 s56, s56, 10")
                k(f"s_add_u32 s56, s56, {VT_OFF}")
            for j in range(3):
                for s in range(2):
                    d = FR + 8 * j + 4 * s
                    for e in range(4):
                        k(f"v_cvt_pk_bf16_f32 {vr(d+e)}, {vr(ACC+16*j+8*s+2*e)}, {vr(ACC+16*j+8*s+2*e+1)}")
                    if part == 0:
                        n = 2 * j + s
                        if n == 4:
                            k("s_add_u32 s56, s56, 4096")
                        k.vmem(f"buffer_store_dwordx4 {vr(d,4)}, {vr(V_L16)}, {sr(SWS,4)}, s56 offen "
                               f"offset:{(n%4)*1024} sc1")
                    else:
                        k.vmem(f"buffer_store_dwordx4 {vr(d,4)}, {vr(V_L16)}, {sr(SWS,4)}, s56 offen "
                               f"offset:{s*1024} sc1")
                if part == 1 and j < 2:
                    k("s_add_u32 s56, s56, 65536")
            if part == 0:
                k(f"s_branch {le}")
        k.label(le)
        self.ts(6)

    def phase_c(self):
        k = self.k
        S_B, S_TB, S_M0, S_O, S_PB = 57, 58, 59, 60, 61
        k(f"s_lshr_b32 {sr(S_B)}, {sr(S_R)}, 3")
        k(f"s_lshl_b32 s56, {sr(S_B)}, 5")
        k(f"s_lshl_b32 s62, {sr(S_CB)}, 1")
        k("s_add_u32 s56, s56, s62")
        k(f"s_mul_i32 {sr(S_TB)}, s56, 49152")
        k(f"s_add_u32 {sr(S_TB)}, {sr(S_TB)}, {T_OFF}")
        k(f"s_lshl_b32 {sr(S_M0)}, {sr(S_W)}, 12")
        k(f"s_add_u32 {sr(S_TB)}, {sr(S_TB)}, {sr(S_M0)}")
        for c in range(6):
            k(f"s_add_u32 {sr(S_O)}, {sr(S_TB)}, {c*16384}")
            k(f"s_add_u32 m0, {sr(S_M0)}, {c*16384}")
            for i in range(4):
                k.vmem(f"buffer_load_dwordx4 {vr(V_L16)}, {sr(SWS,4)}, {sr(S_O)} offen offset:{i*1024} sc1 lds",
                       ("T", c))
        k("s_lshl_b32 s56, s56, 6")
        k(f"s_and_b32 s62, {sr(S_R)}, 7")
        k("s_lshl_b32 s62, s62, 3")
        k("s_add_u32 s56, s56, s62")
        k(f"s_lshl_b32 s62, {sr(S_W)}, 1")
        k("s_add_u32 s56, s56, s62")
        k("s_lshl_b32 s56, s56, 10")
        k(f"s_add_u32 {sr(S_PB)}, s56, {P_OFF}")
        RW = 2
        k(f"v_mov_b32 {vr(RW)}, {vr(V_L16)}")
        k(f"v_add_u32 {vr(RW+1)}, 0x10000, {vr(V_L16)}")
        ACC, FR = 32, 64
        XM = 98304
        XS = XM + 1024
        k(f"v_and_b32 v4, 31, {vr(V_LANE)}")
        k("v_lshlrev_b32 v4, 4, v4")
        k(f"s_lshl_b32 s56, {sr(S_W)}, 2")
        k("v_add_u32 v5, s56, v4")
        k(f"v_add_u32 v4, {XM}, v4")
        k(f"v_add_u32 v5, {XM}, v5")

        def read(f):
            k.ds(f"ds_read_b128 {vr(FR+4*(f%4),4)}, {vr(RW+f//64)} offset:{(f%64)*1024}", ("f", f))

        def softmax(sub):
            A = ACC + 16 * sub
            M, T2 = 8, 9
            k(f"v_max3_f32 {vr(M)}, {vr(A)}, {vr(A+1)}, {vr(A+2)}")
            for e in range(3, 15, 2):
                k(f"v_max3_f32 {vr(M)}, {vr(M)}, {vr(A+e)}, {vr(A+e+1)}")
            k(f"v_max_f32 {vr(M)}, {vr(M)}, {vr(A+15)}")
            k(f"v_mov_b32 {vr(T2)}, {vr(M)}")
            k(f"v_permlane32_swap_b32 {vr(T2)}, {vr(M)}")
            k(f"v_max_f32 {vr(M)}, {vr(M)}, {vr(T2)}")
            k.ds(f"ds_write_b32 v5, {vr(M)} offset:{sub*512}")
            k.wait_lg_all()
            k("s_barrier")
            k.ds(f"ds_read_b128 v[12:15], v4 offset:{sub*512}")
            k.wait_lg_all()
            MM = 16 + sub
            k(f"v_max3_f32 {vr(MM)}, v12, v13, v14")
            k(f"v_max_f32 {vr(MM)}, {vr(MM)}, v15")
            for e in range(16):
                k(f"v_sub_f32 {vr(A+e)}, {vr(A+e)}, {vr(MM)}")
            for e in range(16):
                k(f"v_exp_f32 {vr(A+e)}, {vr(A+e)}")
            k(f"v_add_f32 {vr(M)}, {vr(A)}, {vr(A+1)}")
            for e in range(2, 16):
                k(f"v_add_f32 {vr(M)}, {vr(M)}, {vr(A+e)}")
            k(f"v_mov_b32 {vr(T2)}, {vr(M)}")
            k(f"v_permlane32_swap_b32 {vr(T2)}, {vr(M)}")
            k(f"v_add_f32 {vr(M)}, {vr(M)}, {vr(T2)}")
            k.ds(f"ds_write_b32 v5, {vr(M)} offset:{1024+sub*512}")
            PK = 20
            for s in range(2):
                for e in range(4):
                    k(f"v_cvt_pk_bf16_f32 {vr(PK+4*s+e)}, {vr(A+8*s+2*e)}, {vr(A+8*s+2*e+1)}")
            k(f"s_add_u32 {sr(S_O)}, {sr(S_PB)}, {sub*65536}")
            for s in range(2):
                k.vmem(f"buffer_store_dwordx4 {vr(PK+4*s,4)}, {vr(V_L16)}, {sr(SWS,4)}, {sr(S_O)} offen "
                       f"offset:{s*1024} sc1")

        for sub in range(2):
            for c in range(3 * sub, 3 * sub + 3):
                k.wait_vm(("T", c))
                k("s_barrier")
                f0 = 16 * c
                for f in range(f0, f0 + 3):
                    read(f)
                for f in range(f0, f0 + 16):
                    if f + 3 < f0 + 16:
                        read(f + 3)
                    k.wait_lg(("f", f))
                    ks = f % 48
                    cc = "0" if ks == 0 else vr(ACC + 16 * sub, 16)
                    k(f"v_mfma_f32_32x32x16_bf16 {vr(ACC+16*sub,16)}, {ar(4*ks,4)}, {vr(FR+4*(f%4),4)}, {cc}")
        self.ts(8)
        for sub in range(2):
            softmax(sub)
        k.wait_lg_all()
        k("s_barrier")
        skip = k.newlabel("st")
        k(f"s_cmp_lt_u32 {sr(S_W)}, 2")
        k(f"s_cbranch_scc0 {skip}")
        k(f"s_lshl_b32 s56, {sr(S_W)}, 9")
        k("v_add_u32 v6, s56, v4")
        k.ds("ds_read_b128 v[12:15], v6 offset:1024")
        k.wait_lg_all()
        k("v_add_f32 v12, v12, v13")
        k("v_add_f32 v14, v14, v15")
        k("v_add_f32 v13, v12, v14")
        k(f"s_cmp_eq_u32 {sr(S_W)}, 0")
        k("s_cselect_b64 vcc, -1, 0")
        k("v_cndmask_b32 v12, v17, v16, vcc")
        k(f"s_lshl_b32 s56, {sr(S_B)}, 10")
        k(f"s_lshl_b32 s62, {sr(S_CB)}, 6")
        k("s_add_u32 s56, s56, s62")
        k(f"s_lshl_b32 s62, {sr(S_W)}, 5")
        k("s_add_u32 s56, s56, s62")
        k("s_lshl_b32 s56, s56, 6")
        k(f"s_and_b32 s62, {sr(S_R)}, 7")
        k("s_lshl_b32 s62, s62, 3")
        k("s_add_u32 s56, s56, s62")
        k(f"s_add_u32 s56, s56, {ST_OFF}")
        k(f"v_and_b32 v6, 31, {vr(V_LANE)}")
        k("v_lshlrev_b32 v6, 6, v6")
        k("s_mov_b32 exec_hi, 0")
        k(f"buffer_store_dwordx2 v[12:13], v6, {sr(SWS,4)}, s56 offen sc1")
        k("s_mov_b64 exec, -1")
        k.label(skip)
        self.ts(9)

    def phase_d(self):
        k = self.k
        S_B, S_QB, S_DB, S_VB, S_PB, S_O, S_TK = 57, 58, 59, 60, 61, 62, 63
        k(f"s_lshr_b32 {sr(S_B)}, {sr(S_XCD)}, 2")
        k(f"s_and_b32 s56, {sr(S_XCD)}, 1")
        k("s_lshl_b32 s56, s56, 3")
        k(f"s_and_b32 {sr(S_QB)}, {sr(S_IDX)}, 7")
        k(f"s_add_u32 {sr(S_QB)}, {sr(S_QB)}, s56")
        k(f"s_lshr_b32 s56, {sr(S_XCD)}, 1")
        k("s_and_b32 s56, s56, 1")
        k("s_lshl_b32 s56, s56, 2")
        k(f"s_lshr_b32 {sr(S_DB)}, {sr(S_IDX)}, 3")
        k(f"s_add_u32 {sr(S_DB)}, {sr(S_DB)}, s56")
        k(f"s_mul_i32 s56, {sr(S_B)}, 24")
        k(f"s_mul_i32 s64, {sr(S_DB)}, 3")
        k("s_add_u32 s56, s56, s64")
        k("s_lshl_b32 s56, s56, 6")
        k(f"s_lshl_b32 s64, {sr(S_W)}, 4")
        k("s_add_u32 s56, s56, s64")
        k("s_lshl_b32 s56, s56, 10")
        k(f"s_add_u32 {sr(S_VB)}, s56, {VT_OFF}")
        for j in range(3):
            for s4 in range(4):
                k(f"s_add_u32 {sr(S_O)}, {sr(S_VB)}, {j*65536 + s4*4096}")
                for i in range(4):
                    s = 4 * s4 + i
                    k.vmem(f"buffer_load_dwordx4 {ar((j*16+s)*4,4)}, {vr(V_L16)}, {sr(SWS,4)}, {sr(S_O)} offen "
                           f"offset:{i*1024} sc1", "V")
        k.wait_vm("V")
        k(f"s_lshl_b32 s56, {sr(S_B)}, 5")
        k(f"s_lshl_b32 s64, {sr(S_QB)}, 1")
        k("s_add_u32 s56, s56, s64")
        k("s_lshl_b32 s56, s56, 6")
        k(f"s_lshl_b32 s64, {sr(S_W)}, 4")
        k("s_add_u32 s56, s56, s64")
        k("s_lshl_b32 s56, s56, 10")
        k(f"s_add_u32 {sr(S_PB)}, s56, {P_OFF}")

        def preg(sub, s):
            return ar(192 + 4 * s, 4) if sub == 0 else vr(192 + 4 * s, 4)
        k(f"s_lshl_b32 {sr(S_TK)}, {sr(S_B)}, 10")
        k(f"s_lshl_b32 s64, {sr(S_QB)}, 6")
        k(f"s_add_u32 {sr(S_TK)}, {sr(S_TK)}, s64")
        k(f"s_lshl_b32 s56, {sr(S_TK)}, 6")
        k(f"s_add_u32 s56, s56, {ST_OFF}")
        k(f"v_and_b32 v2, 31, {vr(V_LANE)}")
        k(f"v_lshrrev_b32 v3, 5, {vr(V_LANE)}")
        k("v_lshlrev_b32 v4, 6, v2")
        k("v_lshl_add_u32 v4, v3, 5, v4")
        ST = 8
        for sub in range(2):
            for q in range(2):
                k.vmem(f"buffer_load_dwordx4 {vr(ST+8*sub+4*q,4)}, v4, {sr(SWS,4)}, s56 offen "
                       f"offset:{sub*2048+q*16} sc1", "st")
        for sub in range(2):
            for s4 in range(4):
                k(f"s_add_u32 {sr(S_O)}, {sr(S_PB)}, {sub*65536 + s4*4096}")
                for i in range(4):
                    k.vmem(f"buffer_load_dwordx4 {preg(sub,4*s4+i)}, {vr(V_L16)}, {sr(SWS,4)}, {sr(S_O)} offen "
                           f"offset:{i*1024} sc1", ("P", sub, s4))
        k(f"v_lshrrev_b32 v5, 3, {vr(V_LANE)}")
        k(f"s_lshl_b32 s56, {sr(S_W)}, 3")
        k("v_add_u32 v5, s56, v5")
        k(f"v_and_b32 v6, 7, {vr(V_LANE)}")
        k("s_mov_b32 s56, 1536")
        k("v_mul_lo_u32 v7, v5, s56")
        k("v_lshl_add_u32 v7, v6, 3, v7")
        k(f"s_mul_i32 s56, {sr(S_TK)}, 1536")
        k(f"s_mul_i32 s64, {sr(S_DB)}, 192")
        k("s_add_u32 s65, s56, s64")
        XR = 176
        for sub in range(2):
            k(f"s_add_u32 s56, s65, {sub*32*1536}")
            for j in range(3):
                k.vmem(f"buffer_load_dwordx2 {vr(XR+(sub*3+j)*2,2)}, v7, {sr(SX,4)}, s56 offen offset:{j*64}", "x")
        GT = 160
        k(f"s_mul_i32 s56, {sr(S_B)}, {2304*4}")
        k(f"s_mul_i32 s64, {sr(S_DB)}, 384")
        k("s_add_u32 s56, s56, s64")
        k(f"s_add_u32 s56, s56, {MOD_OFF + 1536*4}")
        k("v_lshlrev_b32 v6, 4, v6")
        for j in range(3):
            k.vmem(f"buffer_load_dwordx4 {vr(GT+4*j,4)}, v6, {sr(SWS,4)}, s56 offen offset:{j*128} sc1", "x")
        k.wait_vm("st")
        F = 24
        k(f"s_and_b32 s56, {sr(S_W)}, 1")
        k("s_cmp_eq_u32 s56, 0")
        k("s_cselect_b64 s[66:67], -1, 0")
        k(f"s_lshr_b32 s56, {sr(S_W)}, 1")
        k("s_cmp_eq_u32 s56, 0")
        k("s_cselect_b64 s[68:69], -1, 0")
        for sub in range(2):
            m = [ST + 8 * sub + 2 * t for t in range(4)]
            l = [x + 1 for x in m]
            k(f"v_max3_f32 v28, {vr(m[0])}, {vr(m[1])}, {vr(m[2])}")
            k(f"v_max_f32 v28, v28, {vr(m[3])}")
            k("v_mov_b32 v29, v28")
            k("v_permlane32_swap_b32 v29, v28")
            k("v_max_f32 v28, v28, v29")
            for t in range(4):
                k(f"v_sub_f32 {vr(m[t])}, {vr(m[t])}, v28")
            for t in range(4):
                k(f"v_exp_f32 {vr(m[t])}, {vr(m[t])}")
            k(f"v_mul_f32 v28, {vr(m[0])}, {vr(l[0])}")
            for t in range(1, 4):
                k(f"v_fmac_f32 v28, {vr(m[t])}, {vr(l[t])}")
            k("v_mov_b32 v29, v28")
            k("v_permlane32_swap_b32 v29, v28")
            k("v_add_f32 v28, v28, v29")
            k("v_rcp_f32 v28, v28")
            for t in range(2):
                k(f"v_cndmask_b32 v30, {vr(m[2+t])}, {vr(m[t])}, s[66:67]")
                k("v_mov_b32 v29, v30")
                k("v_permlane32_swap_b32 v29, v30")
                k("v_cndmask_b32 v30, v30, v29, s[68:69]")
                k(f"v_mul_f32 {vr(F+2*sub+t)}, v30, v28")
        self.ts(11)
        TMP = [32, 48]
        ACC = 64
        WA = 96
        k(f"v_lshlrev_b32 v28, 1, v3")
        k(f"v_xor_b32 v28, v28, {vr(V_LANE)}")
        k(f"s_mul_i32 s56, {sr(S_W)}, 24576")
        for g in range(4):
            k(f"v_xor_b32 v29, {g<<2}, v28")
            k(f"v_lshlrev_b32 v29, 4, v29")
            k(f"v_add_u32 v29, s56, v29")
            k(f"v_add_u32 {vr(WA+g)}, {g*1024}, v29")
        RA = 100
        k(f"v_and_b32 v28, 1, {vr(V_LANE)}")
        k(f"v_lshrrev_b32 v29, 1, {vr(V_LANE)}")
        k("v_and_b32 v29, 3, v29")
        k("v_lshl_add_u32 v30, v28, 5, v5")
        k("v_lshlrev_b32 v31, 2, v29")
        k("v_xor_b32 v30, v30, v31")
        k("v_lshlrev_b32 v31, 1, v28")
        k("v_xor_b32 v30, v30, v31")
        k("v_lshlrev_b32 v30, 4, v30")
        k(f"v_lshl_add_u32 {vr(RA)}, v29, 10, v30")
        k(f"v_add_u32 {vr(RA+1)}, 49152, {vr(RA)}")

        def finalize_tile(sub, j):
            tile = sub * 3 + j
            R = 104
            for src in range(4):
                k.ds(f"ds_read_b128 {vr(R+4*src,4)}, {vr(RA+src//2)} offset:{(src%2)*24576+tile*4096}")
            k.wait_lg_all()
            for e in range(4):
                k(f"v_add_f32 {vr(R+e)}, {vr(R+e)}, {vr(R+4+e)}")
                k(f"v_add_f32 {vr(R+8+e)}, {vr(R+8+e)}, {vr(R+12+e)}")
            for e in range(4):
                k(f"v_add_f32 {vr(R+e)}, {vr(R+e)}, {vr(R+8+e)}")
            x = XR + tile * 2
            k(f"v_lshlrev_b32 {vr(R+4)}, 16, {vr(x)}")
            k(f"v_and_b32 {vr(R+5)}, 0xffff0000, {vr(x)}")
            k(f"v_lshlrev_b32 {vr(R+6)}, 16, {vr(x+1)}")
            k(f"v_and_b32 {vr(R+7)}, 0xffff0000, {vr(x+1)}")
            for e in range(4):
                k(f"v_fmac_f32 {vr(R+4+e)}, {vr(GT+4*j+e)}, {vr(R+e)}")
            k(f"v_cvt_pk_bf16_f32 {vr(R+8)}, {vr(R+4)}, {vr(R+5)}")
            k(f"v_cvt_pk_bf16_f32 {vr(R+9)}, {vr(R+6)}, {vr(R+7)}")
            k(f"s_add_u32 s56, s65, {sub*32*1536}")
            k.vmem(f"buffer_store_dwordx2 {vr(R+8,2)}, v7, {sr(SOUT,4)}, s56 offen offset:{j*64}")

        for sub in range(2):
            for j in range(3):
                tile = sub * 3 + j
                acc = ACC + 16 * (tile % 2)
                for t in range(2):
                    tmp = TMP[t]
                    for s in range(8):
                        ss = 8 * t + s
                        if j == 0 and s % 4 == 0:
                            k.wait_vm(("P", sub, ss // 4))
                        cc = "0" if s == 0 else vr(tmp, 16)
                        k(f"v_mfma_f32_32x32x16_bf16 {vr(tmp,16)}, {ar((j*16+ss)*4,4)}, {preg(sub,ss)}, {cc}")
                for e in range(16):
                    k(f"v_mul_f32 {vr(acc+e)}, {vr(F+2*sub)}, {vr(TMP[0]+e)}")
                for e in range(16):
                    k(f"v_fmac_f32 {vr(acc+e)}, {vr(F+2*sub+1)}, {vr(TMP[1]+e)}")
                for g in range(4):
                    k.ds(f"ds_write_b128 {vr(WA+g)}, {vr(acc+4*g,4)} offset:{tile*4096}")
        k.wait_vm("x")
        k.wait_lg_all()
        k("s_barrier")
        self.ts(12)
        for sub in range(2):
            for j in range(3):
                finalize_tile(sub, j)
        self.ts(13)

    def build(self):
        k = self.k
        self.prologue()
        la, lw, lb = "L_A_ln", "L_A_w", "L_A_done"
        k(f"s_cmp_ge_u32 {sr(S_IDX)}, 24")
        k(f"s_cbranch_scc1 {la}")
        k(f"s_cmp_ge_u32 {sr(S_XCD)}, 4")
        k(f"s_cbranch_scc1 {lw}")
        self.phase_a_gemm(0)
        k(f"s_branch {lb}")
        k.label(lw)
        k.reset_counts()
        self.phase_a_gemm(1)
        k(f"s_branch {lb}")
        k.label(la)
        k.reset_counts()
        self.phase_a_ln()
        k.label(lb)
        k.reset_counts()
        self.grid_barrier(2, 256)
        self.ts(4)
        if self.stop_after != "A":
            self.phase_b()
            self.grid_barrier(3, 256)
            self.ts(7)
            if self.stop_after != "B":
                self.phase_c()
                self.grid_barrier(4, 256)
                self.ts(10)
                if self.stop_after != "C":
                    self.phase_d()
        k.wait_vm_all()
        self.ts(14)
        self.ts_dump()
        k.label("L_end")
        k("s_endpgm")
        body = k.finalize()
        hdr = f"""; DiT adaLN attention block: persistent single-launch kernel (generated by work/gen.py)
; @launch grid=(256,1,1) block=(256,1,1) lds=163840
.amdgcn_target "amdgcn-amd-amdhsa--gfx950"
.text
.globl {NAME}_kernel
.p2align 8
.type {NAME}_kernel,@function
{NAME}_kernel:
"""
        ftr = f""".section .rodata,"a"
.p2align 6
.amdhsa_kernel {NAME}_kernel
  .amdhsa_next_free_vgpr 512
  .amdhsa_next_free_sgpr 102
  .amdhsa_accum_offset 256
  .amdhsa_group_segment_fixed_size 0
  .amdhsa_kernarg_size 64
  .amdhsa_user_sgpr_count 2
  .amdhsa_user_sgpr_kernarg_segment_ptr 1
  .amdhsa_system_sgpr_workgroup_id_x 1
  .amdhsa_float_denorm_mode_32 3
.end_amdhsa_kernel
"""
        return hdr + body + ftr


if __name__ == "__main__":
    import argparse
    ap = argparse.ArgumentParser()
    ap.add_argument("-o", default=f"cdna_kernels/{NAME}.s")
    ap.add_argument("--stop", default=None)
    ap.add_argument("--ts", action="store_true")
    a = ap.parse_args()
    g = Gen(stop_after=a.stop, ts=a.ts)
    s = g.build()
    open(a.o, "w").write(s)
    print("wrote", a.o, len(s), "bytes;", g.k.nops_inserted, "nop sites,", g.k.nop_states, "states")
```

```python
import sys
import os
import struct
sys.path.insert(0, os.path.dirname(os.path.abspath(__file__)))
from asmlib import Asm, vr, ar, sr

NAME = "standalone__dit_adaln_block__diffusion"

WTS_OFF = 0x000000
WB_STRIDE = 16 * 51 * 3072
XN_OFF = 0x500000
T_OFF = 0x800000
VT_OFF = 0xB00000
P_OFF = 0xE00000
ST_OFF = 0x1200000
MOD_OFF = 0x1280000
MODT_OFF = 0x1290000
FL_OFF = 0x12A0000
XF_OFF = FL_OFF + 0x0000
MF_OFF = FL_OFF + 0x2000
WF_OFF = FL_OFF + 0x3000
TF_OFF = FL_OFF + 0x5000
VF_OFF = FL_OFF + 0x6000
PF_OFF = FL_OFF + 0x7000
TS_OFF = 0x12B0000
WS_USED = 0x1400000

QSCALE = 0.036084391824351615 * 1.4426950408889634

S_WG = 2
S_W = 3
SX, SC, SQKV, SWO, SWM, SOUT, SDBG, SWS = 20, 24, 28, 32, 36, 40, 44, 48
S_XCD, S_IDX = 52, 53
S_R, S_CB = 54, 55
S_TS = 70
S_CLK = 86
S_SPIN = 88
S_PEND = 89
S_WISS = 90
S_MASK = 91
S_LINK = 92
S_PC = 96

V_LANE, V_L16, V_N = 0, 1, 2

SPIN_MAX = 0x40000
LNBUF = 143360
GT_LDS = 147456


def f32hex(x):
    return "0x%08x" % struct.unpack("<I", struct.pack("<f", x))[0]


class Gen:
    def __init__(self, stop_after=None, ts=False, opts=()):
        self.opts = set(opts)
        self.k = Asm()
        self.stop_after = stop_after
        self.ts_on = ts
        self.out_policy = ""
        for o in self.opts:
            if o.startswith("out="):
                self.out_policy = " " + o[4:].replace("+", " ")

    def ts(self, i):
        if not self.ts_on:
            return
        k = self.k
        k(f"s_memrealtime {sr(S_CLK,2)}")
        k("s_waitcnt lgkmcnt(0)")
        k.lg = []
        k(f"s_mov_b32 {sr(S_TS+i)}, {sr(S_CLK)}")

    def ts_dump(self):
        if not self.ts_on:
            return
        k = self.k
        k(f"s_lshl_b32 s56, {sr(S_WG)}, 2")
        k(f"s_add_u32 s56, s56, {sr(S_W)}")
        k("s_lshl_b32 s56, s56, 6")
        k(f"s_add_u32 s56, s56, {TS_OFF}")
        k("v_mov_b32 v4, 0")
        for j in range(16):
            k(f"v_writelane_b32 v4, {sr(S_TS+j)}, {j}")
        k(f"v_lshlrev_b32 v5, 2, {vr(V_LANE)}")
        k("s_mov_b64 exec, 0xffff")
        k.vmem(f"buffer_store_dword v4, v5, {sr(SWS,4)}, s56 offen")
        k("s_mov_b64 exec, -1")

    def publish(self, soff):
        k = self.k
        k("s_mov_b64 exec, 1")
        k.vmem(f"buffer_store_dwordx2 {vr(V_N,2)}, off, {sr(SWS,4)}, {soff} sc1", "flag")
        k("s_mov_b64 exec, -1")

    def poll_issue(self, vdst, voff, mask, tag):
        k = self.k
        k(f"s_mov_b64 exec, {mask}")
        k.vmem(f"buffer_load_dwordx2 {vr(vdst,2)}, {vr(voff)}, {sr(SWS,4)}, 0 offen sc1", tag)
        k("s_mov_b64 exec, -1")

    def poll_eval(self, vdst, mask):
        k = self.k
        k(f"s_mov_b64 exec, {mask}")
        k(f"v_cmp_ne_u64 vcc, {vr(vdst,2)}, {vr(V_N,2)}")
        k("s_mov_b64 exec, -1")

    def spin(self, vdst, voff, mask):
        k = self.k
        loop = k.newlabel("spin")
        done = k.newlabel("spun")
        k(f"s_mov_b32 {sr(S_SPIN)}, 0")
        k(f"s_mov_b64 exec, {mask}")
        k.label(loop)
        k(f"buffer_load_dwordx2 {vr(vdst,2)}, {vr(voff)}, {sr(SWS,4)}, 0 offen sc1")
        k("s_waitcnt vmcnt(0)")
        k(f"v_cmp_ne_u64 vcc, {vr(vdst,2)}, {vr(V_N,2)}")
        k(f"s_cbranch_vccz {done}")
        k(f"s_add_u32 {sr(S_SPIN)}, {sr(S_SPIN)}, 1")
        k(f"s_cmp_lt_u32 {sr(S_SPIN)}, {SPIN_MAX}")
        k(f"s_cbranch_scc1 {loop}")
        k.label(done)
        k("s_mov_b64 exec, -1")
        k.vm = []

    def nonce_issue(self):
        self.k.vmem(f"buffer_load_dwordx2 {vr(V_N,2)}, off, {sr(SDBG,4)}, 0 sc1", "nonce")

    def nonce_check(self):
        k = self.k
        ok = k.newlabel("nok")
        loop = k.newlabel("nsp")
        k(f"v_cmp_eq_u32 vcc, 0, {vr(V_N)}")
        k(f"s_cbranch_vccz {ok}")
        k(f"s_mov_b32 {sr(S_SPIN)}, 0")
        k.label(loop)
        k(f"buffer_load_dwordx2 {vr(V_N,2)}, off, {sr(SDBG,4)}, 0 sc1")
        k("s_waitcnt vmcnt(0)")
        k(f"v_cmp_eq_u32 vcc, 0, {vr(V_N)}")
        k(f"s_cbranch_vccz {ok}")
        k(f"s_add_u32 {sr(S_SPIN)}, {sr(S_SPIN)}, 1")
        k(f"s_cmp_lt_u32 {sr(S_SPIN)}, {SPIN_MAX}")
        k(f"s_cbranch_scc1 {loop}")
        k.label(ok)

    def srd(self, s, ptr, nbytes, bias=0):
        k = self.k
        if bias:
            k(f"s_sub_u32 {sr(s)}, {sr(ptr)}, {bias}")
            k(f"s_subb_u32 {sr(s+1)}, {sr(ptr+1)}, 0")
        else:
            k(f"s_mov_b32 {sr(s)}, {sr(ptr)}")
            k(f"s_mov_b32 {sr(s+1)}, {sr(ptr+1)}")
        k(f"s_mov_b32 {sr(s+2)}, {nbytes + bias}")
        k(f"s_mov_b32 {sr(s+3)}, 0x20000")

    def prologue(self):
        k = self.k
        k(f"s_cmp_ge_u32 {sr(S_WG)}, 256")
        k("s_cbranch_scc1 L_end")
        k("s_load_dwordx16 s[4:19], s[0:1], 0")
        k(f"s_memrealtime {sr(S_CLK,2)}")
        k(f"s_getpc_b64 {sr(S_PC,2)}")
        k.label("L_pc")
        k("v_lshrrev_b32 v4, 6, v0")
        k(f"v_and_b32 {vr(V_LANE)}, 63, v0")
        k(f"v_readfirstlane_b32 {sr(S_W)}, v4")
        k(f"v_lshlrev_b32 {vr(V_L16)}, 4, {vr(V_LANE)}")
        k(f"s_sub_u32 {sr(S_PC)}, {sr(S_PC)}, L_pc-{NAME}_kernel")
        k(f"s_subb_u32 {sr(S_PC+1)}, {sr(S_PC+1)}, 0")
        k(f"s_mov_b32 {sr(S_PC+2)}, L_codeend-{NAME}_kernel")
        k(f"s_mov_b32 {sr(S_PC+3)}, 0x20000")
        k(f"s_and_b32 {sr(S_XCD)}, {sr(S_WG)}, 7")
        k(f"s_lshr_b32 {sr(S_IDX)}, {sr(S_WG)}, 3")
        k(f"s_mov_b32 {sr(S_MASK)}, 0xffff0000")
        k(f"s_lshl_b32 s56, {sr(S_WG)}, 2")
        k(f"s_add_u32 s56, s56, {sr(S_W)}")
        k("s_mul_i32 s56, s56, 3072")
        k(f"v_lshlrev_b32 v4, 3, {vr(V_LANE)}")
        k("s_waitcnt lgkmcnt(0)")
        self.srd(SX, 4, 2 * 1024 * 768 * 2)
        self.srd(SWS, 18, WS_USED)
        self.srd(SDBG, 16, 256)
        skip = k.newlabel("nn")
        k(f"s_or_b32 s57, {sr(S_WG)}, {sr(S_W)}")
        k("s_cmp_eq_u32 s57, 0")
        k(f"s_cbranch_scc0 {skip}")
        k(f"s_or_b32 s57, {sr(S_CLK)}, 1")
        k(f"v_mov_b32 {vr(V_N)}, s57")
        k(f"v_mov_b32 {vr(V_N+1)}, {sr(S_CLK+1)}")
        k("s_mov_b64 exec, 1")
        k(f"buffer_store_dwordx2 {vr(V_N,2)}, off, {sr(SDBG,4)}, 0 sc1")
        k("s_mov_b64 exec, -1")
        k.label(skip)
        if self.ts_on:
            k(f"s_mov_b32 {sr(S_TS)}, {sr(S_CLK)}")
            for j in range(1, 16):
                k(f"s_mov_b32 {sr(S_TS+j)}, 0")
            if "tsA" in self.opts:
                self.ts(4)

    VX = 64

    def x_loads(self):
        k = self.k
        for i in range(2):
            for q in range(3):
                off = i * 1536 + q * 512
                k.vmem(f"buffer_load_dwordx2 {vr(self.VX+6*i+2*q,2)}, v4, {sr(SX,4)}, s56 offen offset:{off} nt",
                       "x")

    def roles(self):
        k = self.k
        k(f"s_lshr_b32 s57, {sr(S_XCD)}, 1")
        k("s_lshl_b32 s57, s57, 2")
        k(f"s_and_b32 s58, {sr(S_IDX)}, 3")
        k(f"s_add_u32 {sr(S_R)}, s57, s58")
        k(f"s_and_b32 s57, {sr(S_XCD)}, 1")
        k("s_lshl_b32 s57, s57, 3")
        k(f"s_lshr_b32 s58, {sr(S_IDX)}, 2")
        k(f"s_add_u32 {sr(S_CB)}, s57, s58")

    def code_prefetch(self):
        k = self.k
        k(f"s_lshl_b32 s56, {sr(S_IDX)}, 2")
        k(f"s_add_u32 s56, s56, {sr(S_W)}")
        k("s_lshl_b32 s56, s56, 10")
        k(f"v_add_u32 v148, s56, {vr(V_L16)}")
        k.vmem(f"buffer_load_dwordx4 v[148:151], v148, {sr(S_PC,4)}, 0 offen", "pf")

    def ln8_ops(self):
        k = self.k
        VX, Y = self.VX, 76
        T0 = 112
        p1, p2 = [], []

        def e(line, lst=p1):
            lst.append(lambda: k(line))
        p1.append(lambda: k.wait_vm("x"))
        for i in range(2):
            for n in range(6):
                e(f"v_lshlrev_b32 {vr(Y+12*i+2*n)}, 16, {vr(VX+6*i+n)}")
                e(f"v_and_b32 {vr(Y+12*i+2*n+1)}, {sr(S_MASK)}, {vr(VX+6*i+n)}")
        SM = T0
        for i in range(2):
            e(f"v_pk_add_f32 {vr(SM+2*i,2)}, {vr(Y+12*i,2)}, {vr(Y+12*i+2,2)}")
        for n in range(2, 6):
            for i in range(2):
                e(f"v_pk_add_f32 {vr(SM+2*i,2)}, {vr(SM+2*i,2)}, {vr(Y+12*i+2*n,2)}")
        for i in range(2):
            e(f"v_add_f32 {vr(SM+2*i)}, {vr(SM+2*i)}, {vr(SM+2*i+1)}")

        def wave_sum(extra):
            extra = list(extra)
            for mod in ("quad_perm:[1,0,3,2] row_mask:0xf bank_mask:0xf",
                        "quad_perm:[2,3,0,1] row_mask:0xf bank_mask:0xf",
                        "row_half_mirror row_mask:0xf bank_mask:0xf",
                        "row_mirror row_mask:0xf bank_mask:0xf",
                        "row_bcast:15 row_mask:0xa bank_mask:0xf",
                        "row_bcast:31 row_mask:0xc bank_mask:0xf"):
                for i in range(2):
                    e(f"v_add_f32_dpp {vr(SM+2*i)}, {vr(SM+2*i)}, {vr(SM+2*i)} {mod}")
                if extra:
                    e(extra.pop(0))
            for x in extra:
                e(x)
        WA = T0 + 4
        A, B_, C, D_ = T0 + 6, T0 + 7, T0 + 8, T0 + 9
        wave_sum([f"v_lshrrev_b32 {vr(A)}, 2, {vr(V_LANE)}",
                  f"v_and_b32 {vr(B_)}, 1, {vr(V_LANE)}",
                  f"v_lshl_or_b32 {vr(C)}, {vr(A)}, 1, {vr(B_)}",
                  f"v_and_b32 {vr(D_)}, 7, {vr(C)}",
                  f"v_lshlrev_b32 {vr(C)}, 7, {vr(C)}",
                  f"v_and_b32 {vr(B_)}, 2, {vr(V_LANE)}",
                  f"v_lshl_add_u32 {vr(C)}, {vr(B_)}, 2, {vr(C)}",
                  f"v_add_u32 {vr(C)}, {LNBUF}, {vr(C)}",
                  f"s_lshl_b32 s57, {sr(S_W)}, 1",
                  f"s_mov_b32 s58, {f32hex(1.0/768)}"])
        for i in range(2):
            e(f"v_mul_f32 {vr(SM+2*i)}, s58, {vr(SM+2*i)}")
        e(f"v_xor_b32 {vr(B_)}, s57, {vr(D_)}")
        e(f"v_lshl_add_u32 {vr(WA)}, {vr(B_)}, 4, {vr(C)}")
        for i in range(2):
            e(f"v_readlane_b32 {sr(60+2*i)}, {vr(SM+2*i)}, 63")
        e(f"v_xor_b32 {vr(B_)}, 1, {vr(B_)}")
        e(f"v_lshl_add_u32 {vr(WA+1)}, {vr(B_)}, 4, {vr(C)}")
        for n in range(6):
            for i in range(2):
                e(f"v_pk_add_f32 {vr(Y+12*i+2*n,2)}, {vr(Y+12*i+2*n,2)}, {sr(60+2*i,2)} "
                  f"op_sel_hi:[1,0] neg_lo:[0,1] neg_hi:[0,1]")
        for i in range(2):
            e(f"v_pk_mul_f32 {vr(SM+2*i,2)}, {vr(Y+12*i,2)}, {vr(Y+12*i,2)}")
        for n in range(1, 6):
            for i in range(2):
                e(f"v_pk_fma_f32 {vr(SM+2*i,2)}, {vr(Y+12*i+2*n,2)}, {vr(Y+12*i+2*n,2)}, {vr(SM+2*i,2)}")
        for i in range(2):
            e(f"v_add_f32 {vr(SM+2*i)}, {vr(SM+2*i)}, {vr(SM+2*i+1)}")
        ROW, SEG, RA_, GO = T0 + 10, T0 + 11, T0 + 12, T0 + 13
        wave_sum([f"v_and_b32 {vr(ROW)}, 7, {vr(V_LANE)}",
                  f"v_lshrrev_b32 {vr(SEG)}, 3, {vr(V_LANE)}",
                  f"v_xor_b32 {vr(RA_)}, {vr(ROW)}, {vr(SEG)}",
                  f"v_lshlrev_b32 {vr(RA_)}, 4, {vr(RA_)}",
                  f"v_lshl_add_u32 {vr(RA_)}, {vr(SEG)}, 7, {vr(RA_)}",
                  f"v_mov_b32 {vr(B_)}, {f32hex(1e-5)}"])
        for i in range(2):
            e(f"v_fma_f32 {vr(SM+2*i)}, {vr(SM+2*i)}, s58, {vr(B_)}")
        for i in range(2):
            e(f"v_rsq_f32 {vr(SM+2*i)}, {vr(SM+2*i)}")
        e(f"s_mul_i32 s57, {sr(S_W)}, 3072")
        e(f"s_add_u32 s57, s57, {LNBUF}")
        e(f"v_add_u32 {vr(RA_)}, s57, {vr(RA_)}")
        for i in range(2):
            e(f"v_readlane_b32 {sr(60+2*i)}, {vr(SM+2*i)}, 63")
        e(f"v_lshrrev_b32 {vr(GO)}, 1, {vr(SEG)}")
        e(f"v_lshlrev_b32 {vr(GO)}, 10, {vr(GO)}")
        e(f"v_and_b32 {vr(SEG)}, 1, {vr(SEG)}")
        for n in range(6):
            for i in range(2):
                e(f"v_pk_mul_f32 {vr(Y+12*i+2*n,2)}, {vr(Y+12*i+2*n,2)}, {sr(60+2*i,2)} op_sel_hi:[1,0]")
        e(f"v_lshl_add_u32 {vr(GO)}, {vr(SEG)}, 9, {vr(GO)}")
        e(f"v_lshl_add_u32 {vr(GO)}, {vr(ROW)}, 4, {vr(GO)}")
        for i in range(2):
            for n in range(6):
                e(f"v_cvt_pk_bf16_f32 {vr(VX+6*i+n)}, {vr(Y+12*i+2*n)}, {vr(Y+12*i+2*n+1)}")
            for q in range(3):
                p1.append(lambda i=i, q=q: k.ds(f"ds_write_b64 {vr(WA+i)}, {vr(VX+6*i+2*q,2)} offset:{q*4096}", "lnw"))
        e(f"s_lshr_b32 s57, {sr(S_WG)}, 2")
        e("s_mul_i32 s57, s57, 49152")
        e(f"s_mul_i32 s58, {sr(S_W)}, 12288")
        e("s_add_u32 s57, s57, s58")
        e(f"s_and_b32 s58, {sr(S_WG)}, 3")
        e("s_lshl_b32 s58, s58, 7")
        e("s_add_u32 s57, s57, s58")
        e(f"s_add_u32 s57, s57, {XN_OFF}")
        RB = T0 + 16
        for i in range(3):
            p2.append(lambda i=i: k.ds(f"ds_read_b128 {vr(RB+4*i,4)}, {vr(RA_)} offset:{i*1024}", ("ln", i)))
        for i in range(3):
            def st(i=i):
                k.wait_lg(("ln", i))
                k.vmem(f"buffer_store_dwordx4 {vr(RB+4*i,4)}, {vr(GO)}, {sr(SWS,4)}, s57 offen sc1", "xn")
                if i < 2:
                    k("s_add_u32 s57, s57, 4096")
            p2.append(st)
        return p1, p2

    def ln8(self, fillers=(), every=8):
        k = self.k
        p1, p2 = self.ln8_ops()
        fillers = list(fillers)
        for n, f in enumerate(p1):
            f()
            if fillers and n % every == every - 1:
                fillers.pop(0)()
        while fillers:
            fillers.pop(0)()
        k.wait_lg("lnw")
        k("s_barrier")
        for f in p2:
            f()

    def xf_offset(self, dst):
        k = self.k
        k(f"s_lshl_b32 {dst}, {sr(S_WG)}, 2")
        k(f"s_add_u32 {dst}, {dst}, {sr(S_W)}")
        k(f"s_lshl_b32 {dst}, {dst}, 3")
        k(f"s_add_u32 {dst}, {dst}, {XF_OFF}")

    def xf_poll_addr(self, v):
        k = self.k
        k(f"s_lshl_b32 s57, {sr(S_R)}, 2")
        k(f"s_add_u32 s57, s57, {sr(S_W)}")
        k("s_lshl_b32 s57, s57, 7")
        k(f"s_add_u32 s57, s57, {XF_OFF}")
        k(f"v_lshlrev_b32 {vr(v)}, 3, {vr(V_LANE)}")
        k(f"v_add_u32 {vr(v)}, s57, {vr(v)}")

    def phase_a_gemm(self, mat):
        k = self.k
        S_CBM, S_IB, S_M0A, S_M0B, S_OA, S_OB, S_II, S_KH, S_KS = 64, 65, 66, 67, 68, 69, 94, 95, 59
        S_A0, S_B0 = 60, 61
        k(f"s_and_b32 s57, {sr(S_XCD)}, 1")
        k("s_lshl_b32 s57, s57, 2")
        k(f"s_and_b32 s58, {sr(S_IDX)}, 3")
        k(f"s_add_u32 {sr(S_CBM)}, s58, s57")
        k(f"s_lshr_b32 s57, {sr(S_XCD)}, 1")
        k("s_and_b32 s57, s57, 1")
        k("s_mul_i32 s57, s57, 6")
        k(f"s_lshr_b32 s62, {sr(S_IDX)}, 2")
        k(f"s_add_u32 {sr(S_IB)}, s62, s57")
        k("s_mul_i32 s58, s58, 3")
        k("s_lshl_b32 s62, s62, 1")
        k(f"s_add_u32 {sr(S_KS)}, s58, s62")
        k(f"s_cmp_ge_u32 {sr(S_KS)}, 12")
        k("s_cselect_b32 s58, 12, 0")
        k(f"s_sub_u32 {sr(S_KS)}, {sr(S_KS)}, s58")
        if "norot" in self.opts:
            k(f"s_mov_b32 {sr(S_KS)}, 0")
        k(f"s_and_b32 {sr(S_II)}, {sr(S_W)}, 1")
        k(f"s_lshr_b32 {sr(S_KH)}, {sr(S_W)}, 1")
        BIAS = 4096
        k(f"s_mul_i32 {sr(S_A0)}, {sr(S_IB)}, {64*4608}")
        k(f"s_mul_i32 s57, {sr(S_W)}, {16*4608}")
        k(f"s_add_u32 {sr(S_A0)}, {sr(S_A0)}, s57")
        k(f"s_add_u32 {sr(S_A0)}, {sr(S_A0)}, {BIAS + (3072 if mat else 0)}")
        VA, VB = 4, 6
        k(f"v_lshrrev_b32 v9, 3, {vr(V_LANE)}")
        k(f"v_and_b32 v10, 7, {vr(V_LANE)}")
        k(f"v_lshrrev_b32 v11, 4, {vr(V_LANE)}")
        k("v_mul_u32_u24 v12, 4608, v9")
        k("v_xor_b32 v13, v10, v11")
        k("v_xor_b32 v14, 4, v13")
        k("v_lshl_add_u32 v13, v13, 4, v12")
        k("v_lshl_add_u32 v14, v14, 4, v12")
        k(f"v_add_u32 {vr(VA)}, {sr(S_A0)}, v13")
        k(f"s_add_u32 s57, {sr(S_A0)}, {8*4608 - 1024}")
        k(f"v_add_u32 {vr(VA+1)}, s57, v14")
        if mat == 0:
            k(f"s_mul_i32 {sr(S_B0)}, {sr(S_CBM)}, {96*4608}")
            k(f"s_mul_i32 s57, {sr(S_W)}, {24*4608}")
            k(f"s_add_u32 {sr(S_B0)}, {sr(S_B0)}, s57")
            k(f"s_add_u32 {sr(S_B0)}, {sr(S_B0)}, {1536 + BIAS}")
            k(f"s_cmp_eq_u32 {sr(S_II)}, 0")
            k("s_cselect_b64 vcc, -1, 0")
            k("v_cndmask_b32 v15, v14, v13, vcc")
            k("v_cndmask_b32 v9, v13, v14, vcc")
            k(f"v_add_u32 {vr(VB)}, {sr(S_B0)}, v15")
            k(f"s_add_u32 s57, {sr(S_B0)}, {8*4608 - 1024}")
            k(f"v_add_u32 {vr(VB+1)}, s57, v9")
            k(f"s_add_u32 s57, {sr(S_B0)}, {16*4608 - 2048}")
            k(f"v_add_u32 {vr(VB+2)}, s57, v15")
        else:
            k(f"v_lshrrev_b32 v15, 2, {vr(V_LANE)}")
            k("v_mul_u32_u24 v15, 1536, v15")
            k(f"v_and_b32 v9, 3, {vr(V_LANE)}")
            k("v_lshl_add_u32 v15, v9, 4, v15")
            k(f"s_mul_i32 {sr(S_B0)}, {sr(S_CBM)}, 192")
            for i in range(3):
                k(f"s_mul_i32 s57, {sr(S_W)}, 3")
                k(f"s_add_u32 s57, s57, {i}")
                k("s_lshr_b32 s58, s57, 2")
                k("s_and_b32 s57, s57, 3")
                k(f"s_mul_i32 s57, s57, {16*1536}")
                k("s_lshl_b32 s58, s58, 6")
                k("s_add_u32 s57, s57, s58")
                k(f"s_add_u32 s57, s57, {sr(S_B0)}")
                k(f"s_add_u32 s57, s57, {BIAS - 1024*i}")
                k(f"v_add_u32 {vr(VB+i)}, s57, v15")
        k(f"s_lshl_b32 {sr(S_M0A)}, {sr(S_W)}, 11")
        k(f"s_mul_i32 {sr(S_M0B)}, {sr(S_W)}, 3072")
        k(f"s_add_u32 {sr(S_M0B)}, {sr(S_M0B)}, 8192")
        SB = SQKV if mat == 0 else SWO

        def issue_ops(st):
            sl = st % 7
            ops = []

            def a0():
                k(f"s_lshl_b32 {sr(S_OA)}, {sr(S_KS)}, 7")
                if mat:
                    k(f"s_mul_i32 {sr(S_OB)}, {sr(S_KS)}, {64*1536}")
                k(f"s_add_u32 m0, {sr(S_M0A)}, {sl*20480}")
                k.vmem(f"buffer_load_dwordx4 {vr(VA)}, {sr(SQKV,4)}, {sr(S_OA)} offen lds", ("A", st))

            def a1():
                k.vmem(f"buffer_load_dwordx4 {vr(VA+1)}, {sr(SQKV,4)}, {sr(S_OA)} offen offset:1024 lds", ("A", st))
            ob = S_OB if mat else S_OA

            def b(i):
                def f():
                    if i == 0:
                        k(f"s_add_u32 m0, {sr(S_M0B)}, {sl*20480}")
                    k.vmem(f"buffer_load_dwordx4 {vr(VB+i)}, {sr(SB,4)}, {sr(ob)} offen offset:{i*1024} lds",
                           ("A", st))
                    if i == 2:
                        k(f"s_add_u32 {sr(S_KS)}, {sr(S_KS)}, 1")
                        k(f"s_cmp_eq_u32 {sr(S_KS)}, 12")
                        k(f"s_cselect_b32 {sr(S_KS)}, 0, {sr(S_KS)}")
                return f
            return [a0, a1, b(0), b(1), b(2)]

        def issue(st):
            for f in issue_ops(st):
                f()

        if "dmaonly" in self.opts:
            for st in range(12):
                issue(st)
                if st in (0, 1, 2, 3, 4, 6, 8, 11):
                    self.ts(5 + (0, 1, 2, 3, 4, 6, 8, 11).index(st))
            k.wait_vm_all()
            self.ts(13)
            k("s_branch L_fin")
        for st in range(3):
            issue(st)
        if "tsA" in self.opts:
            self.ts(5)
        self.roles()
        RA, RB = 100, 106
        k(f"v_and_b32 v20, 31, {vr(V_LANE)}")
        k(f"v_lshrrev_b32 v21, 5, {vr(V_LANE)}")
        k("v_lshrrev_b32 v22, 1, v20")
        k("v_and_b32 v22, 7, v22")
        k(f"s_lshl_b32 s57, {sr(S_KH)}, 2")
        k("v_add_u32 v23, s57, v21")
        for kk in range(2):
            k(f"v_add_u32 v24, {2*kk}, v23")
            k("v_xor_b32 v24, v24, v22")
            k("v_lshlrev_b32 v24, 4, v24")
            k("v_lshl_add_u32 v24, v20, 7, v24")
            k(f"s_lshl_b32 s57, {sr(S_II)}, 12")
            k(f"v_add_u32 {vr(RA+kk*3)}, s57, v24")
            k(f"v_add_u32 {vr(RA+kk*3+1)}, 61440, {vr(RA+kk*3)}")
            k(f"v_add_u32 {vr(RA+kk*3+2)}, 122880, {vr(RA+kk*3)}")
            if mat == 0:
                k(f"v_add_u32 {vr(RB+kk*3)}, 8192, v24")
                k(f"v_add_u32 {vr(RB+kk*3+1)}, {8192+61440}, v24")
                k(f"v_add_u32 {vr(RB+kk*3+2)}, {8192+122880}, v24")
        if mat:
            k(f"v_lshrrev_b32 v24, 2, {vr(V_LANE)}")
            k("v_and_b32 v24, 3, v24")
            k("v_lshl_add_u32 v24, v21, 3, v24")
            k("v_lshlrev_b32 v24, 6, v24")
            k(f"v_lshrrev_b32 v25, 4, {vr(V_LANE)}")
            k("v_and_b32 v25, 1, v25")
            k("v_lshl_add_u32 v24, v25, 5, v24")
            k(f"v_and_b32 v25, 3, {vr(V_LANE)}")
            k("v_lshl_add_u32 v24, v25, 3, v24")
            k(f"s_lshl_b32 s57, {sr(S_KH)}, 11")
            k("s_add_u32 s57, s57, 8192")
            k(f"v_add_u32 {vr(RB)}, s57, v24")
            k(f"v_add_u32 {vr(RB+1)}, 61440, {vr(RB)}")
            k(f"v_add_u32 {vr(RB+2)}, 122880, {vr(RB)}")
        if "noln" in self.opts:
            self.code_prefetch()
            issue(3)
            issue(4)
        else:
            self.ln8(issue_ops(3) + [self.code_prefetch] + issue_ops(4), every=10)
            self.ts(1)
            self.nonce_issue()
        ACC = 16

        def FA(s, kk):
            return 32 * s + 4 * kk

        def FB(s, kk, j):
            return 32 * s + 8 + 12 * kk + 4 * j

        def read_ops(st):
            sl = st % 7
            win, so = sl // 3, (sl % 3) * 20480
            s = st & 1
            ops = []
            for kk in range(2):
                ops.append(lambda kk=kk: k.ds(f"ds_read_b128 {ar(FA(s,kk),4)}, {vr(RA+kk*3+win)} offset:{so}",
                                               ("r", st, kk)))
                for j in range(3):
                    d = FB(s, kk, j)
                    if mat == 0:
                        ops.append(lambda kk=kk, j=j, d=d: k.ds(
                            f"ds_read_b128 {ar(d,4)}, {vr(RB+kk*3+win)} offset:{so+j*4096}", ("r", st, kk)))
                    else:
                        for t in range(2):
                            ops.append(lambda kk=kk, j=j, d=d, t=t: k.ds(
                                f"ds_read_b64_tr_b16 {ar(d+2*t,2)}, {vr(RB+win)} "
                                f"offset:{so+j*4096+(16*kk+4*t)*64}", ("r", st, kk)))
            return ops
        MT, MA = 112, 128

        def mt_addr():
            k(f"s_lshl_b32 s57, {sr(S_II)}, 1")
            k(f"s_add_u32 s57, s57, {sr(S_KH)}")
            k("s_lshl_b32 s57, s57, 4")
            k(f"s_lshl_b32 s58, {sr(S_IB)}, 6")
            k("s_add_u32 s57, s57, s58")
            k(f"v_and_b32 {vr(MA)}, 15, {vr(V_LANE)}")
            k(f"v_add_u32 {vr(MA)}, s57, {vr(MA)}")
            k(f"v_and_b32 {vr(MA+1)}, 16, {vr(V_LANE)}")
            k(f"v_mul_u32_u24 {vr(MA+1)}, 48, {vr(MA+1)}")
            k(f"v_add_u32 {vr(MA)}, {vr(MA)}, {vr(MA+1)}")
            if mat == 0:
                k(f"s_mul_i32 s57, {sr(S_CBM)}, 96")
                k("s_add_u32 s57, s57, 768")
                k(f"v_add_u32 {vr(MA+1)}, s57, {vr(V_LANE)}")
                k(f"v_subrev_u32 {vr(MA+2)}, 32, {vr(MA+1)}")
                k(f"v_cmp_gt_u32 vcc, 32, {vr(V_LANE)}")
                k(f"v_cndmask_b32 {vr(MA)}, {vr(MA+2)}, {vr(MA)}, vcc")
                k(f"v_add_u32 {vr(MA+1)}, 32, {vr(MA+1)}")
                k(f"v_lshlrev_b32 {vr(MA+1)}, 4, {vr(MA+1)}")
            k(f"v_lshlrev_b32 {vr(MA)}, 4, {vr(MA)}")
            k(f"s_mov_b32 s94, {MODT_OFF}")
            k(f"s_mov_b32 s95, {MODT_OFF + 1536*16}")

        def mt_loads(tag):
            ops = []
            for kp in range(2):
                for e_ in range(2 if mat == 0 else 1):
                    ops.append(lambda kp=kp, e_=e_: k.vmem(
                        f"buffer_load_dwordx4 {vr(MT+8*e_+4*kp,4)}, {vr(MA+e_)}, {sr(SWS,4)}, {sr(94+kp)} offen sc1",
                        tag))
            return ops

        def mt_check():
            regs = [MT + 8 * e_ + 4 * kp + 2 for e_ in range(2 if mat == 0 else 1) for kp in range(2)]
            k(f"v_cmp_ne_u64 vcc, {vr(regs[0],2)}, {vr(V_N,2)}")
            k("s_mov_b64 s[62:63], vcc")
            for r_ in regs[1:]:
                k(f"v_cmp_ne_u64 vcc, {vr(r_,2)}, {vr(V_N,2)}")
                k("s_or_b64 s[62:63], s[62:63], vcc")
        plan = {0: [5, 6], 1: [7], 2: [8], 3: [9], 4: [10], 5: [11]}
        if "plan2" in self.opts:
            plan = {0: [5, 6], 1: [7], 2: [8, 9], 3: [10], 4: [11]}
            plan = {0: [5, 6], 1: [7], 2: [8], 3: [9], 4: [10], 5: [11]}
        k.wait_vm(("A", 0))
        k("s_barrier")
        for f in read_ops(0):
            f()
        for st in range(12):
            s = st & 1
            nxt = read_ops(st + 1) if st + 1 < 12 else []
            per = (len(nxt) + 2) // 3 if nxt else 0
            dma = []
            for x in plan.get(st, []):
                assert x - 7 < st
                dma += [lambda x=x, i=i: issue_ops(x)[i]() for i in range(5)]
            dper = -(-len(dma) // 5)
            for n in range(6):
                kk, j = n // 3, n % 3
                if j == 0:
                    k.wait_lg(("r", st, kk))
                c = "0" if (st == 0 and kk == 0) else vr(ACC + 16 * j, 16)
                k(f"v_mfma_f32_32x32x16_bf16 {vr(ACC+16*j,16)}, {ar(FA(s,kk),4)}, {ar(FB(s,kk,j),4)}, {c}")
                if n != 3:
                    for _ in range(dper):
                        if dma:
                            dma.pop(0)()
                if n == 3:
                    if st + 1 < 12:
                        k.wait_vm(("A", st + 1))
                        k("s_barrier")
                    if "tsA" in self.opts and st in (0, 2, 4, 6, 8, 10):
                        self.ts(8 + st // 2)
                    if st == 4 and "noln" not in self.opts:
                        self.nonce_check()
                        self.xf_offset("s57")
                        self.publish("s57")
                if n >= 3:
                    for _ in range(per):
                        if nxt:
                            nxt.pop(0)()
            assert not dma and not nxt
            if st == 6:
                mt_addr()
            if st == 8:
                for f in mt_loads("mt"):
                    f()
            if st == 9:
                self.xf_poll_addr(9)
            if st == 10:
                self.poll_issue(12, 9, "0xffff", "poll")
        self.ts(2)
        S_BW = 59
        k(f"s_and_b32 s57, {sr(S_W)}, 1")
        k("s_lshl_b32 s57, s57, 1")
        k(f"s_lshr_b32 s58, {sr(S_W)}, 1")
        k(f"s_add_u32 {sr(S_BW)}, s57, s58")
        XA, XR, TA = 100, 101, 102
        k(f"s_mul_i32 s57, {sr(S_W)}, 6144")
        k(f"v_add_u32 {vr(XA)}, s57, {vr(V_L16)}")
        k(f"s_xor_b32 s57, {sr(S_W)}, 2")
        k("s_mul_i32 s57, s57, 6144")
        k(f"v_add_u32 {vr(XR)}, s57, {vr(V_L16)}")
        k(f"s_lshl_b32 s57, {sr(S_W)}, 10")
        k(f"s_add_u32 s57, s57, {LNBUF}")
        k(f"v_lshl_add_u32 {vr(TA)}, {vr(V_LANE)}, 2, s57")
        k(f"v_lshrrev_b32 {vr(TA+1)}, 5, {vr(V_LANE)}")
        k(f"v_lshl_add_u32 {vr(TA+1)}, {vr(TA+1)}, 4, s57")
        k(f"v_and_b32 {vr(TA+2)}, 31, {vr(V_LANE)}")
        k(f"v_lshlrev_b32 {vr(TA+3)}, 4, {vr(TA+2)}")
        k(f"v_lshl_add_u32 {vr(TA+2)}, {vr(TA+2)}, 2, s57")
        k(f"v_lshrrev_b32 {vr(TA+4)}, 5, {vr(V_LANE)}")
        k(f"s_mov_b32 s57, {WB_STRIDE}")
        k(f"v_mul_lo_u32 {vr(TA+4)}, {vr(TA+4)}, s57")
        k(f"v_add_u32 {vr(TA+3)}, {vr(TA+3)}, {vr(TA+4)}")
        k(f"s_add_u32 s57, {sr(S_CBM)}, {mat*8}")
        k("s_mul_i32 s58, s57, 51")
        k(f"s_lshl_b32 s56, {sr(S_IB)}, 2")
        k("s_add_u32 s56, s56, s58")
        k(f"s_add_u32 s56, s56, {sr(S_BW)}")
        k(f"s_mul_i32 {sr(S_OB)}, s56, 3072")
        if WTS_OFF:
            k(f"s_add_u32 {sr(S_OB)}, {sr(S_OB)}, {WTS_OFF}")
        k(f"s_lshr_b32 s56, {sr(S_IB)}, 2")
        k("s_add_u32 s56, s56, s58")
        k("s_add_u32 s56, s56, 48")
        k("s_mul_i32 s56, s56, 3072")
        k(f"s_and_b32 s58, {sr(S_IB)}, 1")
        k("s_lshl_b32 s58, s58, 9")
        k("s_add_u32 s56, s56, s58")
        k(f"s_lshr_b32 s58, {sr(S_IB)}, 1")
        k("s_and_b32 s58, s58, 1")
        k("s_lshl_b32 s58, s58, 2")
        k(f"s_add_u32 s58, s58, {sr(S_BW)}")
        k("s_lshl_b32 s58, s58, 1")
        k(f"s_add_u32 {sr(S_OA)}, s56, s58")
        if WTS_OFF:
            k(f"s_add_u32 {sr(S_OA)}, {sr(S_OA)}, {WTS_OFF}")
        k("s_lshl_b32 s57, s57, 2")
        k(f"s_add_u32 s57, s57, {sr(S_BW)}")
        k("s_lshl_b32 s57, s57, 7")
        k(f"s_lshl_b32 s58, {sr(S_IB)}, 3")
        k("s_add_u32 s57, s57, s58")
        k(f"s_add_u32 {sr(S_PEND)}, s57, {WF_OFF}")
        lok, lsp = k.newlabel("mtok"), k.newlabel("mtsp")
        k.wait_vm("mt")
        mt_check()
        k(f"s_cbranch_scc0 {lok}")
        k(f"s_mov_b32 {sr(S_SPIN)}, 0")
        k.label(lsp)
        sv = list(k.vm)
        for f in mt_loads("mt"):
            f()
        k("s_waitcnt vmcnt(0)")
        k.vm = sv
        mt_check()
        k(f"s_cbranch_scc0 {lok}")
        k(f"s_add_u32 {sr(S_SPIN)}, {sr(S_SPIN)}, 1")
        k(f"s_cmp_lt_u32 {sr(S_SPIN)}, {SPIN_MAX}")
        k(f"s_cbranch_scc1 {lsp}")
        k.label(lok)
        if "tsA2" in self.opts:
            self.ts(5)
        ne = 2 if mat == 0 else 1
        for e_ in range(ne):
            for b_ in range(2):
                k(f"v_add_f32 {vr(MT+8*e_+b_)}, {vr(MT+8*e_+b_)}, {vr(MT+8*e_+4+b_)}")
        k(f"v_cmp_le_u32 vcc, 16, {vr(V_LANE)}")
        k(f"v_cndmask_b32 {vr(MT+2)}, 0, 1.0, vcc")
        for b_ in range(2):
            k(f"v_add_f32 {vr(MT+b_)}, {vr(MT+b_)}, {vr(MT+2)}")
            if mat == 0:
                k(f"v_add_f32 {vr(MT+8+b_)}, 1.0, {vr(MT+8+b_)}")
        for e_ in range(ne):
            for b_ in range(2):
                k.ds(f"ds_write_b32 {vr(TA)}, {vr(MT+8*e_+b_)} offset:{b_*512+e_*256}", "tw")
        k("s_barrier")
        l1 = k.newlabel("akh1")
        l2 = k.newlabel("aend")
        k(f"s_lshr_b32 s57, {sr(S_W)}, 1")
        k("s_cmp_eq_u32 s57, 0")
        k(f"s_cbranch_scc0 {l1}")
        saved = (list(k.vm), list(k.lg))
        TK = 132
        GC = 164
        GH = 170
        RD = 64
        for kh in range(2):
            if kh == 1:
                k.label(l1)
                k.vm, k.lg = list(saved[0]), list(saved[1])
            send = 8 if kh == 0 else 0
            keep = 0 if kh == 0 else 8
            for j in range(3):
                for q in range(2):
                    k.ds(f"ds_write_b128 {vr(XA)}, {vr(ACC+16*j+send+4*q,4)} offset:{(j*2+q)*1024}", "xw")
            k.wait_lg("tw")
            for b_ in range(2):
                for wh in range(2):
                    for q in range(2):
                        k.ds(f"ds_read_b128 {vr(TK+16*b_+8*wh+4*q,4)}, {vr(TA+1)} "
                             f"offset:{b_*512+wh*64+q*32}", "tk")
            k.wait_lg("xw")
            k("s_barrier")
            if mat == 0:
                for j in range(3):
                    for b_ in range(2):
                        k.ds(f"ds_read_b32 {vr(GC+2*j+b_)}, {vr(TA+2)} offset:{b_*512+128+j*128}", "gc")
                k.wait_lg("tk")
            for j in range(3):
                for q in range(2):
                    k.ds(f"ds_read_b128 {vr(RD+8*j+4*q,4)}, {vr(XR)} offset:{(j*2+q)*1024}", ("e", j))
            if mat == 0:
                k.wait_lg("gc")
                k(f"s_mov_b32 s60, {f32hex(QSCALE)}")
                for j in range(3):
                    k(f"v_pk_mul_f32 {vr(GC+2*j,2)}, {vr(GC+2*j,2)}, s[60:61] op_sel_hi:[1,0]")
                k("s_mov_b32 s62, 0")
                k("s_mov_b32 s63, -1")
                for j in range(3):
                    k(f"v_cndmask_b32 {vr(GH+j)}, {vr(GC+2*j)}, {vr(GC+2*j+1)}, s[62:63]")
            else:
                k.wait_lg("tk")
            U = 176
            PK = 188
            for j in range(3):
                V = RD + 8 * j
                k.wait_lg(("e", j))
                for e in range(4):
                    k(f"v_pk_add_f32 {vr(V+2*e,2)}, {vr(ACC+16*j+keep+2*e,2)}, {vr(V+2*e,2)}")
                for b_ in range(2):
                    u = U + 4 * j + 2 * b_
                    t_ = TK + 16 * b_
                    k(f"v_pk_mul_f32 {vr(u,2)}, {vr(V,2)}, {vr(t_,2)}")
                    for e in range(1, 4):
                        k(f"v_pk_fma_f32 {vr(u,2)}, {vr(V+2*e,2)}, {vr(t_+2*e,2)}, {vr(u,2)}")
                for b_ in range(2):
                    g_ = TK + 16 * b_ + 8
                    X = 196 + 8 * b_
                    for e in range(4):
                        k(f"v_pk_mul_f32 {vr(X+2*e,2)}, {vr(V+2*e,2)}, {vr(g_+2*e,2)}")
                    if mat == 0:
                        sel = "op_sel_hi:[1,0]" if b_ == 0 else "op_sel:[0,1] op_sel_hi:[1,1]"
                        for e in range(4):
                            k(f"v_pk_mul_f32 {vr(X+2*e,2)}, {vr(X+2*e,2)}, {vr(GC+2*j,2)} {sel}")
                    pk = 212 + 8 * j + 4 * b_
                    for e in range(4):
                        k(f"v_cvt_pk_bf16_f32 {vr(pk+e)}, {vr(X+2*e)}, {vr(X+2*e+1)}")
                    if b_ == 0:
                        k.vmem(f"buffer_store_dwordx4 {vr(pk,4)}, {vr(V_L16)}, {sr(SWS,4)}, {sr(S_OB)} offen "
                               f"offset:{j*1024} sc1", "w")
                    else:
                        if j == 0:
                            k(f"s_add_u32 s57, {sr(S_OB)}, {WB_STRIDE}")
                        k.vmem(f"buffer_store_dwordx4 {vr(pk,4)}, {vr(V_L16)}, {sr(SWS,4)}, s57 offen "
                               f"offset:{j*1024} sc1", "w")
            for j in range(3):
                for b_ in range(2):
                    u = U + 4 * j + 2 * b_
                    k(f"v_add_f32 {vr(u)}, {vr(u)}, {vr(u+1)}")
            for j in range(3):
                k(f"v_permlane32_swap_b32 {vr(U+4*j)}, {vr(U+4*j+2)}")
            for j in range(3):
                k(f"v_add_f32 {vr(U+4*j)}, {vr(U+4*j)}, {vr(U+4*j+2)}")
            if mat == 0:
                for j in range(3):
                    k(f"v_mul_f32 {vr(U+4*j)}, {vr(U+4*j)}, {vr(GH+j)}")
            for j in range(3):
                k(f"v_cvt_pk_bf16_f32 {vr(U+4*j)}, {vr(U+4*j)}, {vr(U+4*j)}")
            for j in range(3):
                k.vmem(f"buffer_store_short {vr(U+4*j)}, {vr(TA+3)}, {sr(SWS,4)}, {sr(S_OA)} offen "
                       f"offset:{j*1024} sc1", "w")
            if kh == 0:
                k(f"s_branch {l2}")
        k.label(l2)
        self.ts(3)

    def phase_a_gemv(self):
        k = self.k
        S_G, S_CG, S_KP, S_O = 64, 65, 66, 67
        k(f"s_lshl_b32 {sr(S_G)}, {sr(S_XCD)}, 3")
        k(f"s_add_u32 {sr(S_G)}, {sr(S_G)}, {sr(S_IDX)}")
        k(f"s_sub_u32 {sr(S_G)}, {sr(S_G)}, 24")
        k(f"s_lshr_b32 {sr(S_CG)}, {sr(S_G)}, 1")
        k(f"s_and_b32 {sr(S_KP)}, {sr(S_G)}, 1")
        k(f"s_sub_u32 s57, {sr(S_G)}, 24")
        k(f"s_cmp_ge_u32 {sr(S_G)}, 48")
        k(f"s_cselect_b32 {sr(S_CG)}, s57, {sr(S_CG)}")
        k(f"s_cselect_b32 {sr(S_KP)}, 0, {sr(S_KP)}")
        k(f"s_cmp_ge_u32 {sr(S_G)}, 60")
        k(f"s_cselect_b32 {sr(S_CG)}, 0, {sr(S_CG)}")
        VT = 5
        k(f"s_lshl_b32 s57, {sr(S_W)}, 6")
        k(f"v_add_u32 {vr(VT)}, s57, {vr(V_LANE)}")
        VC = 6
        k(f"v_lshlrev_b32 v12, 1, {vr(VT)}")
        for b in range(2):
            for i in range(3):
                k.vmem(f"buffer_load_ushort {vr(VC+b*3+i)}, v12, {sr(SC,4)}, 0 offen offset:{b*1536+i*512}", "c")
        VW = 160
        k(f"v_lshrrev_b32 v13, 3, {vr(V_LANE)}")
        k(f"s_mul_i32 s57, {sr(S_W)}, 96")
        k("v_add_u32 v13, s57, v13")
        k("v_mul_u32_u24 v14, 9216, v13")
        k(f"v_and_b32 v15, 7, {vr(V_LANE)}")
        k("v_lshl_add_u32 v14, v15, 4, v14")

        def w_load_ops(second=False):
            base = VW + 48 if second else VW

            def op(i):
                def f():
                    if i == 0:
                        if second:
                            k(f"s_mov_b32 {sr(S_O)}, {384*9216}")
                        else:
                            k(f"s_mul_i32 {sr(S_O)}, {sr(S_KP)}, {384*9216}")
                        k(f"s_lshl_b32 s57, {sr(S_CG)}, 7")
                        k(f"s_add_u32 {sr(S_O)}, {sr(S_O)}, s57")
                    ins = f"buffer_load_dwordx4 {vr(base+4*i,4)}, v14, {sr(SWM,4)}, {sr(S_O)} offen nt"
                    if second:
                        k(ins)
                    else:
                        k.vmem(ins, ("w", i))
                    if i < 11:
                        k(f"s_add_u32 {sr(S_O)}, {sr(S_O)}, {8*9216}")
                return f
            return [op(i) for i in range(12)]

        def w2_loads():
            k(f"s_sub_u32 s58, {sr(S_G)}, 48")
            k("s_cmp_lt_u32 s58, 12")
            k("s_cselect_b64 exec, -1, 0")
            for f in w_load_ops(True):
                f()
            k("s_mov_b64 exec, -1")
        wops = w_load_ops()
        for f in wops[:8]:
            f()
        if "tsA" in self.opts:
            self.ts(5)
        self.roles()
        if "tsA" in self.opts:
            self.ts(8)
        k.wait_vm("c")
        if "tsA" in self.opts:
            self.ts(9)
        k(f"s_mov_b32 s57, {f32hex(-1.4426950408889634)}")
        for n in range(6):
            k(f"v_lshlrev_b32 {vr(VC+n)}, 16, {vr(VC+n)}")
        for n in range(6):
            k(f"v_mul_f32 {vr(16+n)}, s57, {vr(VC+n)}")
        for n in range(6):
            k(f"v_exp_f32 {vr(16+n)}, {vr(16+n)}")
        for n in range(6):
            k(f"v_add_f32 {vr(16+n)}, 1.0, {vr(16+n)}")
        for n in range(6):
            k(f"v_rcp_f32 {vr(16+n)}, {vr(16+n)}")
        for i in range(3):
            k(f"v_mul_f32 {vr(22+2*i)}, {vr(VC+i)}, {vr(16+i)}")
            k(f"v_mul_f32 {vr(23+2*i)}, {vr(VC+3+i)}, {vr(16+3+i)}")
        k(f"v_lshlrev_b32 v12, 3, {vr(VT)}")
        for i in range(3):
            k.ds(f"ds_write_b64 v12, {vr(22+2*i,2)} offset:{i*2048}")
        self.ln8(wops[8:] + [self.code_prefetch], every=10)
        self.ts(1)
        self.nonce_issue()
        w2_loads()

        def gemv_pass(first):
            VWp = VW if first else VW + 48
            wt = "w" if first else "w2"
            RED = 8192 if first else 12288
            AC = 40
            SV = 56
            TM = 32
            k(f"s_mul_i32 s57, {sr(S_KP)}, {384*8}")
            k("v_lshl_add_u32 v12, v13, 3, s57")
            for i in range(2):
                k.ds(f"ds_read_b64 {vr(SV+2*i,2)}, v12 offset:{i*64}", ("s", i))
            for i in range(12):
                k.wait_vm((wt, i))
                if "tsA" in self.opts and first and i in (0, 11):
                    self.ts(10 if i == 0 else 11)
                for d in range(4):
                    k(f"v_lshlrev_b32 {vr(TM+2*d)}, 16, {vr(VWp+4*i+d)}")
                    k(f"v_and_b32 {vr(TM+2*d+1)}, {sr(S_MASK)}, {vr(VWp+4*i+d)}")
                k.wait_lg(("s", i))
                s = vr(SV + 2 * (i % 2), 2)
                for c in range(8):
                    src = vr(TM + (c & ~1), 2)
                    sel = "op_sel_hi:[0,1,1]" if c % 2 == 0 else "op_sel:[1,0,0] op_sel_hi:[1,1,1]"
                    if i == 0:
                        sel = "op_sel_hi:[0,1]" if c % 2 == 0 else "op_sel:[1,0] op_sel_hi:[1,1]"
                        k(f"v_pk_mul_f32 {vr(AC+2*c,2)}, {src}, {s} {sel}")
                    else:
                        k(f"v_pk_fma_f32 {vr(AC+2*c,2)}, {src}, {s}, {vr(AC+2*c,2)} {sel}")
                if i + 2 < 12:
                    k.ds(f"ds_read_b64 {vr(SV+2*(i%2),2)}, v12 offset:{(i+2)*64}", ("s", i + 2))
            if first:
                k.wait_vm("nonce")
                self.nonce_check()
                self.xf_offset("s57")
                self.publish("s57")
            for i in range(8):
                k(f"v_permlane32_swap_b32 {vr(AC+i)}, {vr(AC+i+8)}")
            for i in range(8):
                k(f"v_add_f32 {vr(AC+i)}, {vr(AC+i)}, {vr(AC+i+8)}")
            for i in range(4):
                k(f"v_permlane16_swap_b32 {vr(AC+i)}, {vr(AC+i+4)}")
            for i in range(4):
                k(f"v_add_f32 {vr(AC+i)}, {vr(AC+i)}, {vr(AC+i+4)}")
            for i in range(4):
                k(f"v_add_f32_dpp {vr(AC+i)}, {vr(AC+i)}, {vr(AC+i)} row_ror:8 row_mask:0xf bank_mask:0xf")
            k(f"s_lshl_b32 s57, {sr(S_W)}, 10")
            k(f"v_add_u32 v12, s57, {vr(V_L16)}")
            k.ds(f"ds_write_b128 v12, {vr(AC,4)} offset:{RED}")
            k.wait_lg_all()
            k("s_barrier")
            skip = k.newlabel("red")
            k(f"s_cmp_eq_u32 {sr(S_W)}, 0")
            k(f"s_cbranch_scc0 {skip}")
            sv = list(k.vm)
            for w in range(1, 4):
                k.ds(f"ds_read_b128 {vr(44+4*(w-1),4)}, {vr(V_L16)} offset:{RED+w*1024}")
            k.wait_lg_all()
            for e in range(4):
                k(f"v_add_f32 {vr(44+e)}, {vr(44+e)}, {vr(48+e)}")
                k(f"v_add_f32 {vr(AC+e)}, {vr(AC+e)}, {vr(52+e)}")
            for e in range(4):
                k(f"v_add_f32 {vr(AC+e)}, {vr(AC+e)}, {vr(44+e)}")
            k(f"v_and_b32 v32, 8, {vr(V_LANE)}")
            k("v_cmp_eq_u32 vcc, 0, v32")
            k(f"v_cndmask_b32 v36, {vr(AC+2)}, {vr(AC)}, vcc")
            k(f"v_cndmask_b32 v37, {vr(AC+3)}, {vr(AC+1)}, vcc")
            k(f"v_lshrrev_b32 v35, 4, {vr(V_LANE)}")
            k("v_lshlrev_b32 v35, 1, v35")
            k("v_lshrrev_b32 v32, 3, v32")
            k("v_add_u32 v35, v35, v32")
            k("v_lshl_add_u32 v35, v15, 3, v35")
            if first:
                gate, nost = k.newlabel("gate"), k.newlabel("nost")
                k(f"s_cmp_ge_u32 {sr(S_G)}, 60")
                k(f"s_cbranch_scc1 {nost}")
                k(f"s_cmp_ge_u32 {sr(S_G)}, 48")
                k(f"s_cbranch_scc1 {gate}")
                k(f"v_mov_b32 v38, {vr(V_N)}")
                k(f"v_mov_b32 v39, {vr(V_N+1)}")
                k("v_lshlrev_b32 v35, 4, v35")
                k(f"s_mul_i32 s57, {sr(S_KP)}, {1536*16}")
                k(f"s_lshl_b32 s58, {sr(S_CG)}, 10")
                k("s_add_u32 s57, s57, s58")
                k(f"s_add_u32 s57, s57, {MODT_OFF}")
                k(f"buffer_store_dwordx4 v[36:39], v35, {sr(SWS,4)}, s57 offen sc1")
                k(f"s_branch {nost}")
                k.label(gate)
            k("v_lshlrev_b32 v35, 2, v35")
            k(f"s_lshl_b32 s58, {sr(S_CG)}, 8")
            k(f"s_add_u32 s57, s58, {MOD_OFF + (0 if first else 2*2304*4)}")
            k(f"buffer_store_dword v36, v35, {sr(SWS,4)}, s57 offen sc1")
            k(f"s_add_u32 s57, s57, {2304*4}")
            k(f"buffer_store_dword v37, v35, {sr(SWS,4)}, s57 offen sc1")
            if first:
                k.label(nost)
            k.label(skip)
            k.vm = sv
        gemv_pass(True)
        self.ts(2)
        done = k.newlabel("gvdone")
        k(f"s_sub_u32 s58, {sr(S_G)}, 48")
        k("s_cmp_lt_u32 s58, 12")
        k(f"s_cbranch_scc0 {done}")
        k(f"s_mov_b32 {sr(S_KP)}, 1")
        gemv_pass(False)
        k.wait_vm_all()
        k(f"s_cmp_eq_u32 {sr(S_W)}, 0")
        k(f"s_cbranch_scc0 {done}")
        k(f"s_lshl_b32 s57, {sr(S_G)}, 3")
        k(f"s_add_u32 s57, s57, {MF_OFF}")
        self.publish("s57")
        k.label(done)
        k.vm = []
        k(f"s_mov_b32 {sr(S_PEND)}, 0")
        self.xf_poll_addr(9)
        self.poll_issue(12, 9, "0xffff", "poll")
        k.wait_vm_all()
        self.ts(3)

    HB = 64

    def phase_b_pre(self):
        k = self.k
        HB = self.HB
        S_HB, S_WB, S_M0, S_O = 64, 65, 66, 67
        ok = k.newlabel("xfok")
        k("s_waitcnt vmcnt(9)")
        self.poll_eval(12, "0xffff")
        k(f"s_cbranch_vccz {ok}")
        k("s_waitcnt vmcnt(0)")
        np_ = k.newlabel("np")
        k(f"s_cmp_eq_u32 {sr(S_PEND)}, 0")
        k(f"s_cbranch_scc1 {np_}")
        self.publish(sr(S_PEND))
        k(f"s_mov_b32 {sr(S_PEND)}, 0")
        k.label(np_)
        self.spin(12, 9, "0xffff")
        k.label(ok)
        k.vm = ["wst"] * 9
        self.ts(4)
        k(f"s_lshl_b32 s57, {sr(S_R)}, 2")
        k(f"s_add_u32 s57, s57, {sr(S_W)}")
        k(f"s_mul_i32 {sr(S_HB)}, s57, 49152")
        k(f"s_add_u32 {sr(S_HB)}, {sr(S_HB)}, {XN_OFF}")

        def xn_load(f):
            if f % 4 == 0 and f:
                k(f"s_add_u32 {sr(S_HB)}, {sr(S_HB)}, 4096")
            k.vmem(f"buffer_load_dwordx4 {vr(HB+4*f,4)}, {vr(V_L16)}, {sr(SWS,4)}, {sr(S_HB)} offen "
                   f"offset:{(f%4)*1024} sc1", ("h", f // 4))
        N1, N2 = self.NX1, self.NX2
        for f in range(N1):
            xn_load(f)
        k(f"s_lshr_b32 s57, {sr(S_R)}, 3")
        k("s_lshl_b32 s57, s57, 4")
        k(f"s_add_u32 s57, s57, {sr(S_CB)}")
        k(f"s_mul_i32 {sr(S_WB)}, s57, {51*3072}")
        k(f"s_mul_i32 {sr(S_M0)}, {sr(S_W)}, 3072")
        k(f"s_add_u32 {sr(S_WB)}, {sr(S_WB)}, {sr(S_M0)}")
        if WTS_OFF:
            k(f"s_add_u32 {sr(S_WB)}, {sr(S_WB)}, {WTS_OFF}")
        k(f"s_lshl_b32 s57, {sr(S_CB)}, 9")
        k(f"s_add_u32 s57, s57, {WF_OFF}")
        k(f"v_lshlrev_b32 v9, 3, {vr(V_LANE)}")
        k("v_add_u32 v9, s57, v9")
        k.wait_vm("wst")
        np2 = k.newlabel("np")
        k(f"s_cmp_eq_u32 {sr(S_PEND)}, 0")
        k(f"s_cbranch_scc1 {np2}")
        k("s_mov_b64 exec, 1")
        k(f"buffer_store_dwordx2 {vr(V_N,2)}, off, {sr(SWS,4)}, {sr(S_PEND)} sc1")
        k("s_mov_b64 exec, -1")
        k.label(np2)
        self.ts(5)
        for f in range(N1, N2):
            xn_load(f)
        wmask = "s_mov_b32 exec_lo, 0x0fff0fff\ns_mov_b32 exec_hi, 0x0fff0fff"
        k(wmask)
        k.vmem(f"buffer_load_dwordx2 v[12:13], v9, {sr(SWS,4)}, 0 offen sc1", "wpoll")
        k("s_mov_b64 exec, -1")
        for f in range(N2, 48):
            xn_load(f)
        k.wait_vm("wpoll")
        lw = k.newlabel("wok")
        k(wmask)
        k(f"v_cmp_ne_u64 vcc, v[12:13], {vr(V_N,2)}")
        k("s_mov_b64 exec, -1")
        k(f"s_cbranch_vccz {lw}")
        sv = list(k.vm)
        self.spin_at(12, 9, wmask)
        k.label(lw)
        k.vm = sv
        self.ts(6)
        for c in range(self.NWPRE):
            for f in self.w_issue_ops(c):
                f()
        for i in range(4):
            k(f"v_mov_b32 {vr(8+i)}, 0x3f803f80")
        self.ts(7)

    NX1, NX2 = 20, 36
    NWPRE = 6

    def w_issue_ops(self, c):
        k = self.k
        S_WB, S_M0, S_O = 65, 66, 67
        ops = []

        def f(i):
            def g():
                if i == 0:
                    k(f"s_add_u32 {sr(S_O)}, {sr(S_WB)}, {c*12288}")
                    k(f"s_add_u32 m0, {sr(S_M0)}, {c*12288}")
                k.vmem(f"buffer_load_dwordx4 {vr(V_L16)}, {sr(SWS,4)}, {sr(S_O)} offen offset:{i*1024} sc1 lds",
                       ("W", c))
            return g
        return [f(i) for i in range(3)]

    def phase_b(self):
        k = self.k
        HB = self.HB
        RW = 4
        k(f"v_mov_b32 {vr(RW)}, {vr(V_L16)}")
        k(f"v_add_u32 {vr(RW+1)}, 0x10000, {vr(V_L16)}")
        k(f"v_add_u32 {vr(RW+2)}, 0x20000, {vr(V_L16)}")
        ACC = 16
        NR, DIST = 8, 5
        lv = k.newlabel("bV")
        le = k.newlabel("bE")
        k(f"s_cmp_lt_u32 {sr(S_CB)}, 8")
        k(f"s_cbranch_scc0 {lv}")
        saved = (list(k.vm), list(k.lg))
        for part in range(2):
            if part == 1:
                k.label(lv)
                k.vm, k.lg = list(saved[0]), list(saved[1])

            def read(f):
                k.ds(f"ds_read_b128 {ar(4*(f%NR),4)}, {vr(RW+f//64)} offset:{(f%64)*1024}", ("f", f))
            k.wait_vm(("W", 0))
            k("s_barrier")
            for f in range(DIST):
                read(f)
            dma = []
            for f in range(153):
                c, m = f // 12, f % 12
                if m == 0 and c + self.NWPRE < 13:
                    dma = self.w_issue_ops(c + self.NWPRE)
                nf = f + DIST
                if nf < 153:
                    if nf % 12 == 0:
                        k.wait_vm(("W", nf // 12))
                        k("s_barrier")
                    read(nf)
                k.wait_lg(("f", f))
                ks, j = f // 3, f % 3
                cc = "0" if ks == 0 else vr(ACC + 16 * j, 16)
                hx = vr(HB + 4 * ks, 4) if ks < 48 else vr(8, 4)
                if part == 0:
                    k(f"v_mfma_f32_32x32x16_bf16 {vr(ACC+16*j,16)}, {ar(4*(f%NR),4)}, {hx}, {cc}")
                else:
                    k(f"v_mfma_f32_32x32x16_bf16 {vr(ACC+16*j,16)}, {hx}, {ar(4*(f%NR),4)}, {cc}")
                if m in (1, 5, 9) and dma:
                    dma.pop(0)()
            k("s_barrier")
            self.ts(8)
            if part == 0:
                k(f"s_lshl_b32 s57, {sr(S_R)}, 2")
                k(f"s_add_u32 s57, s57, {sr(S_W)}")
                k("s_mul_i32 s56, s57, 48")
                k(f"s_mul_i32 s58, {sr(S_CB)}, 6")
                k("s_add_u32 s56, s56, s58")
                k("s_lshl_b32 s56, s56, 10")
                k(f"s_add_u32 s56, s56, {T_OFF}")
                k("s_lshl_b32 s57, s57, 3")
                k(f"s_add_u32 s57, s57, {sr(S_CB)}")
                k("s_lshl_b32 s57, s57, 3")
                k(f"s_add_u32 {sr(S_PEND)}, s57, {TF_OFF}")
            else:
                k(f"s_lshr_b32 s58, {sr(S_R)}, 3")
                k("s_mul_i32 s56, s58, 24")
                k(f"s_sub_u32 s60, {sr(S_CB)}, 8")
                k("s_mul_i32 s61, s60, 3")
                k("s_add_u32 s56, s56, s61")
                k("s_lshl_b32 s56, s56, 6")
                k(f"s_and_b32 s61, {sr(S_R)}, 7")
                k("s_lshl_b32 s62, s61, 3")
                k("s_add_u32 s56, s56, s62")
                k(f"s_lshl_b32 s62, {sr(S_W)}, 1")
                k("s_add_u32 s56, s56, s62")
                k("s_lshl_b32 s56, s56, 10")
                k(f"s_add_u32 s56, s56, {VT_OFF}")
                k("s_lshl_b32 s57, s58, 3")
                k("s_add_u32 s57, s57, s60")
                k("s_lshl_b32 s57, s57, 3")
                k("s_add_u32 s57, s57, s61")
                k("s_lshl_b32 s57, s57, 2")
                k(f"s_add_u32 s57, s57, {sr(S_W)}")
                k("s_lshl_b32 s57, s57, 3")
                k(f"s_add_u32 {sr(S_PEND)}, s57, {VF_OFF}")
            for j in range(3):
                for s in range(2):
                    d = ACC + 16 * j + 8 * s
                    for e in range(4):
                        k(f"v_cvt_pk_bf16_f32 {vr(d+e)}, {vr(ACC+16*j+8*s+2*e)}, {vr(ACC+16*j+8*s+2*e+1)}")
                    if part == 0:
                        n = 2 * j + s
                        if n == 4:
                            k("s_add_u32 s56, s56, 4096")
                        k.vmem(f"buffer_store_dwordx4 {vr(d,4)}, {vr(V_L16)}, {sr(SWS,4)}, s56 offen "
                               f"offset:{(n%4)*1024} sc1", "bst")
                    else:
                        k.vmem(f"buffer_store_dwordx4 {vr(d,4)}, {vr(V_L16)}, {sr(SWS,4)}, s56 offen "
                               f"offset:{s*1024} sc1", "bst")
                if part == 1 and j < 2:
                    k("s_add_u32 s56, s56, 65536")
            if part == 0:
                k(f"s_branch {le}")
        k.label(le)
        self.ts(9)

    S_B, S_QB, S_DB, S_VO, S_PB, S_XO = 64, 65, 66, 67, 68, 69
    V_GO = 10
    XM_LDS = 98304
    ML_LDS = 98304 + 1024
    A_RING, A_X, A_G = 192, 220, 232

    def spin_at(self, vdst, voff, mask, off=0):
        k = self.k
        loop = k.newlabel("spin")
        done = k.newlabel("spun")
        o = f" offset:{off}" if off else ""
        k(f"s_mov_b32 {sr(S_SPIN)}, 0")
        k(mask)
        k.label(loop)
        k(f"buffer_load_dwordx2 {vr(vdst,2)}, {vr(voff)}, {sr(SWS,4)}, 0 offen{o} sc1")
        k("s_waitcnt vmcnt(0)")
        k(f"v_cmp_ne_u64 vcc, {vr(vdst,2)}, {vr(V_N,2)}")
        k(f"s_cbranch_vccz {done}")
        k(f"s_add_u32 {sr(S_SPIN)}, {sr(S_SPIN)}, 1")
        k(f"s_cmp_lt_u32 {sr(S_SPIN)}, {SPIN_MAX}")
        k(f"s_cbranch_scc1 {loop}")
        k.label(done)
        k("s_mov_b64 exec, -1")
        k.vm = []

    def phase_c(self):
        k = self.k
        HB = self.HB
        S_B, S_QB, S_DB, S_VO, S_PB, S_XO = self.S_B, self.S_QB, self.S_DB, self.S_VO, self.S_PB, self.S_XO
        S_TB, S_M0, S_O, S_R0 = 60, 61, 62, 63
        k(f"s_lshr_b32 {sr(S_B)}, {sr(S_XCD)}, 2")
        k(f"s_and_b32 s56, {sr(S_XCD)}, 1")
        k("s_lshl_b32 s56, s56, 3")
        k(f"s_and_b32 {sr(S_QB)}, {sr(S_IDX)}, 7")
        k(f"s_add_u32 {sr(S_QB)}, {sr(S_QB)}, s56")
        k(f"s_lshr_b32 s56, {sr(S_XCD)}, 1")
        k("s_and_b32 s56, s56, 1")
        k("s_lshl_b32 s56, s56, 2")
        k(f"s_lshr_b32 {sr(S_DB)}, {sr(S_IDX)}, 3")
        k(f"s_add_u32 {sr(S_DB)}, {sr(S_DB)}, s56")
        k(f"s_lshl_b32 {sr(S_R0)}, {sr(S_B)}, 5")
        k(f"s_lshl_b32 s56, {sr(S_CB)}, 1")
        k(f"s_add_u32 {sr(S_R0)}, {sr(S_R0)}, s56")
        k(f"s_mul_i32 {sr(S_TB)}, {sr(S_R0)}, 49152")
        k(f"s_lshl_b32 {sr(S_M0)}, {sr(S_W)}, 12")
        k(f"s_add_u32 {sr(S_TB)}, {sr(S_TB)}, {sr(S_M0)}")
        k(f"s_add_u32 {sr(S_TB)}, {sr(S_TB)}, {T_OFF}")
        k(f"s_lshl_b32 s56, {sr(S_R0)}, 6")
        k(f"s_add_u32 s56, s56, {TF_OFF}")
        k(f"s_lshl_b32 s57, {sr(S_B)}, 3")
        k(f"s_add_u32 s57, s57, {sr(S_DB)}")
        k("s_lshl_b32 s57, s57, 8")
        k(f"s_lshl_b32 s58, {sr(S_W)}, 6")
        k("s_add_u32 s57, s57, s58")
        k(f"s_add_u32 s57, s57, {VF_OFF - 128}")
        k(f"v_mov_b32 v9, {MF_OFF + 48*8 - 24*8}")
        k("v_mov_b32 v11, s57")
        k(f"v_cmp_gt_u32 vcc, 24, {vr(V_LANE)}")
        k("v_cndmask_b32 v9, v9, v11, vcc")
        k("v_mov_b32 v11, s56")
        k(f"v_cmp_gt_u32 vcc, 16, {vr(V_LANE)}")
        k("v_cndmask_b32 v9, v9, v11, vcc")
        k(f"v_lshl_add_u32 v9, {vr(V_LANE)}, 3, v9")
        k(f"s_lshl_b32 s56, {sr(S_R0)}, 6")
        k(f"s_and_b32 s57, {sr(S_R)}, 7")
        k("s_lshl_b32 s58, s57, 3")
        k("s_add_u32 s56, s56, s58")
        k(f"s_lshl_b32 s58, {sr(S_W)}, 1")
        k("s_add_u32 s56, s56, s58")
        k("s_lshl_b32 s56, s56, 10")
        k(f"s_add_u32 {sr(S_PB)}, s56, {P_OFF}")
        k(f"s_lshl_b32 s56, {sr(S_R0)}, 3")
        k("s_add_u32 s56, s56, s57")
        k("s_lshl_b32 s56, s56, 2")
        k(f"s_add_u32 s56, s56, {sr(S_W)}")
        k("s_lshl_b32 s94, s56, 8")
        k(f"s_add_u32 s94, s94, {ST_OFF}")
        k("s_lshl_b32 s95, s56, 3")
        k(f"s_add_u32 s95, s95, {PF_OFF}")
        k(f"s_mul_i32 s56, {sr(S_B)}, 24")
        k(f"s_mul_i32 s57, {sr(S_DB)}, 3")
        k("s_add_u32 s56, s56, s57")
        k("s_lshl_b32 s56, s56, 6")
        k(f"s_lshl_b32 s57, {sr(S_W)}, 4")
        k("s_add_u32 s56, s56, s57")
        k("s_lshl_b32 s56, s56, 10")
        k(f"s_add_u32 {sr(S_VO)}, s56, {VT_OFF}")
        k(f"s_lshl_b32 s56, {sr(S_B)}, 4")
        k(f"s_add_u32 s56, s56, {sr(S_QB)}")
        k(f"s_mul_i32 s56, s56, {64*1536}")
        k(f"s_mul_i32 s57, {sr(S_DB)}, 192")
        k(f"s_add_u32 {sr(S_XO)}, s56, s57")
        GO = self.V_GO
        k(f"v_lshrrev_b32 v14, 3, {vr(V_LANE)}")
        k(f"s_lshl_b32 s56, {sr(S_W)}, 3")
        k("v_add_u32 v14, s56, v14")
        k(f"v_mul_u32_u24 {vr(GO)}, 1536, v14")
        k(f"v_and_b32 v15, 7, {vr(V_LANE)}")
        k(f"v_lshl_add_u32 {vr(GO)}, v15, 3, {vr(GO)}")
        k("v_lshlrev_b32 v15, 4, v15")
        RW = 4
        k(f"v_mov_b32 {vr(RW)}, {vr(V_L16)}")
        k(f"v_add_u32 {vr(RW+1)}, 0x10000, {vr(V_L16)}")
        k(f"v_and_b32 v8, 31, {vr(V_LANE)}")
        k("v_lshlrev_b32 v7, 4, v8")
        k(f"v_add_u32 v7, {self.XM_LDS}, v7")
        k(f"s_lshl_b32 s56, {sr(S_W)}, 2")
        k("v_add_u32 v6, s56, v7")
        k("v_lshlrev_b32 v8, 3, v8")
        k.wait_vm_all()
        self.publish(sr(S_PEND))
        self.ts(10)
        self.spin_at(12, 9, "s_bfm_b64 exec, 36, 0")
        self.ts(11)
        for c in range(6):
            k(f"s_add_u32 {sr(S_O)}, {sr(S_TB)}, {c*16384}")
            k(f"s_add_u32 m0, {sr(S_M0)}, {c*16384}")
            for i in range(4):
                k.vmem(f"buffer_load_dwordx4 {vr(V_L16)}, {sr(SWS,4)}, {sr(S_O)} offen offset:{i*1024} sc1 lds",
                       ("T", c))
        pre = []

        def xl(sub, j):
            def f():
                if j == 0:
                    k(f"s_add_u32 s56, {sr(S_XO)}, {sub*32*1536}")
                k.vmem(f"buffer_load_dwordx2 {ar(self.A_X+2*(3*sub+j),2)}, {vr(GO)}, {sr(SX,4)}, s56 offen "
                       f"offset:{j*64}", "x")
            return f

        def gl(kp, j):
            def f():
                if j == 0:
                    if kp == 0:
                        k(f"s_mul_i32 s57, {sr(S_B)}, {2304*4}")
                        k(f"s_mul_i32 s58, {sr(S_DB)}, 384")
                        k("s_add_u32 s57, s57, s58")
                        k(f"s_add_u32 s57, s57, {MOD_OFF + 1536*4}")
                    else:
                        k(f"s_add_u32 s57, s57, {2*2304*4}")
                k.vmem(f"buffer_load_dwordx4 {ar(self.A_G+12*kp+4*j,4)}, v15, {sr(SWS,4)}, s57 offen "
                       f"offset:{j*128} sc1", "g")
            return f

        def vl(j, s):
            def f():
                if s % 4 == 0:
                    k(f"s_add_u32 s59, {sr(S_VO)}, {j*65536 + s*1024}")
                k.vmem(f"buffer_load_dwordx4 {ar((j*16+s)*4,4)}, {vr(V_L16)}, {sr(SWS,4)}, s59 offen "
                       f"offset:{(s%4)*1024} sc1", "V")
            return f
        for kp in range(2):
            pre += [gl(kp, j) for j in range(3)]
        for j in range(3):
            pre += [vl(j, s) for s in range(16)]
        for sub in range(2):
            pre += [xl(sub, j) for j in range(3)]

        ACC = 16
        NR, DIST = 7, 5

        def read(f):
            k.ds(f"ds_read_b128 {ar(self.A_RING+4*(f%NR),4)}, {vr(RW+f//64)} offset:{(f%64)*1024}", ("f", f))

        def softmax_ops(sub):
            A = ACC + 16 * sub
            M, T2 = 48, 49
            ST_ = 50 + 2 * sub
            X = 56
            ops = []

            def e(line):
                ops.append(lambda: k(line))
            e(f"v_max3_f32 {vr(M)}, {vr(A)}, {vr(A+1)}, {vr(A+2)}")
            e(f"v_max3_f32 {vr(T2)}, {vr(A+3)}, {vr(A+4)}, {vr(A+5)}")
            for x in range(6, 14, 4):
                e(f"v_max3_f32 {vr(M)}, {vr(M)}, {vr(A+x)}, {vr(A+x+1)}")
                e(f"v_max3_f32 {vr(T2)}, {vr(T2)}, {vr(A+x+2)}, {vr(A+x+3)}")
            e(f"v_max3_f32 {vr(M)}, {vr(M)}, {vr(A+14)}, {vr(A+15)}")
            e(f"v_max_f32 {vr(M)}, {vr(M)}, {vr(T2)}")
            e(f"v_mov_b32 {vr(T2)}, {vr(M)}")
            e(f"v_permlane32_swap_b32 {vr(T2)}, {vr(M)}")
            e(f"v_max_f32 {vr(M)}, {vr(M)}, {vr(T2)}")
            ops.append(lambda: k.ds(f"ds_write_b32 v6, {vr(M)} offset:{sub*512}", ("mw", sub)))

            def bar():
                k.wait_lg(("mw", sub))
                k("s_barrier")
                k.ds(f"ds_read_b128 {vr(X,4)}, v7 offset:{sub*512}", ("mr", sub))
            ops.append(bar)
            nbar = len(ops)
            ops.append(lambda: k.wait_lg(("mr", sub)))
            e(f"v_max3_f32 {vr(ST_)}, {vr(X)}, {vr(X+1)}, {vr(X+2)}")
            e(f"v_max_f32 {vr(ST_)}, {vr(ST_)}, {vr(X+3)}")
            for x in range(16):
                e(f"v_sub_f32 {vr(A+x)}, {vr(A+x)}, {vr(ST_)}")
            for x in range(16):
                e(f"v_exp_f32 {vr(A+x)}, {vr(A+x)}")
            e(f"v_add_f32 {vr(M)}, {vr(A)}, {vr(A+1)}")
            e(f"v_add_f32 {vr(T2)}, {vr(A+2)}, {vr(A+3)}")
            for x in range(4, 16, 2):
                e(f"v_add_f32 {vr(M)}, {vr(M)}, {vr(A+x)}")
                e(f"v_add_f32 {vr(T2)}, {vr(T2)}, {vr(A+x+1)}")
            for s in range(2):
                d = A + 8 * s
                for x in range(4):
                    e(f"v_cvt_pk_bf16_f32 {vr(d+x)}, {vr(d+2*x)}, {vr(d+2*x+1)}")

                def st(s=s, d=d):
                    if s == 0:
                        k(f"s_add_u32 s58, {sr(S_PB)}, {sub*65536}")
                    k.vmem(f"buffer_store_dwordx4 {vr(d,4)}, {vr(V_L16)}, {sr(SWS,4)}, s58 offen "
                           f"offset:{s*1024} sc1", ("P", sub))
                ops.append(st)
            e(f"v_add_f32 {vr(M)}, {vr(M)}, {vr(T2)}")
            e(f"v_mov_b32 {vr(T2)}, {vr(M)}")
            e(f"v_permlane32_swap_b32 {vr(T2)}, {vr(M)}")
            e(f"v_add_f32 {vr(ST_+1)}, {vr(M)}, {vr(T2)}")

            def stst():
                k(f"s_add_u32 s58, s94, {sub*8192}")
                k("s_mov_b32 exec_hi, 0")
                k.vmem(f"buffer_store_dwordx2 {vr(ST_,2)}, v8, {sr(SWS,4)}, s58 offen sc1", ("P", sub))
                k("s_mov_b32 exec_hi, -1")
            ops.append(stst)
            return ops

        k.wait_vm(("T", 0))
        k("s_barrier")
        for f in range(DIST):
            read(f)
        sm0 = []
        for f in range(96):
            sub, ks = f // 48, f % 48
            nf = f + DIST
            if nf < 96:
                if nf % 16 == 0:
                    k.wait_vm(("T", nf // 16))
                    k("s_barrier")
                read(nf)
            k.wait_lg(("f", f))
            cc = "0" if ks == 0 else vr(ACC + 16 * sub, 16)
            k(f"v_mfma_f32_32x32x16_bf16 {vr(ACC+16*sub,16)}, {vr(HB+4*ks,4)}, "
              f"{ar(self.A_RING+4*(f%NR),4)}, {cc}")
            if f == 48 + 3:
                sm0 = softmax_ops(0)
            if sub == 0:
                if f % 2 == 1 and pre:
                    pre.pop(0)()
            else:
                n = 3
                while sm0 and n:
                    sm0.pop(0)()
                    n -= 1
                if f % 2 == 1 and pre:
                    pre.pop(0)()
        while sm0:
            sm0.pop(0)()
        while pre:
            pre.pop(0)()
        self.ts(13)
        for f in softmax_ops(1):
            f()
        k.wait_vm(("P", 0))
        self.publish("s95")

    def phase_d(self):
        k = self.k
        S_B, S_QB, S_DB, S_VO, S_PB, S_XO = self.S_B, self.S_QB, self.S_DB, self.S_VO, self.S_PB, self.S_XO
        GO = self.V_GO
        S_O, S_PS, S_SS = 62, 60, 61
        k(f"s_lshl_b32 s56, {sr(S_B)}, 5")
        k(f"s_lshl_b32 s57, {sr(S_QB)}, 1")
        k("s_add_u32 s56, s56, s57")
        k("s_lshl_b32 s57, s56, 6")
        k(f"s_lshl_b32 s58, {sr(S_W)}, 4")
        k("s_add_u32 s57, s57, s58")
        k("s_lshl_b32 s57, s57, 10")
        k(f"s_add_u32 {sr(S_PS)}, s57, {P_OFF}")
        k("s_lshl_b32 s57, s56, 3")
        k(f"s_lshl_b32 s58, {sr(S_W)}, 1")
        k("s_add_u32 s57, s57, s58")
        k(f"s_lshl_b32 {sr(S_SS)}, s57, 10")
        k(f"s_add_u32 {sr(S_SS)}, {sr(S_SS)}, {ST_OFF}")
        k("s_lshl_b32 s57, s57, 5")
        k(f"s_add_u32 s57, s57, {PF_OFF}")
        k(f"v_lshlrev_b32 v9, 3, {vr(V_LANE)}")
        k("v_add_u32 v9, s57, v9")
        k(f"v_lshrrev_b32 v60, 5, {vr(V_LANE)}")
        k("v_lshl_add_u32 v8, v60, 10, v8")
        WA = 4
        k("v_lshlrev_b32 v61, 1, v60")
        k(f"v_xor_b32 v61, v61, {vr(V_LANE)}")
        k(f"s_mul_i32 s56, {sr(S_W)}, 24576")
        for g in range(4):
            k(f"v_xor_b32 v62, {g<<2}, v61")
            k("v_lshlrev_b32 v62, 4, v62")
            k("v_add_u32 v62, s56, v62")
            k(f"v_add_u32 {vr(WA+g)}, {g*1024}, v62")
        RA = 11
        k(f"v_and_b32 v60, 1, {vr(V_LANE)}")
        k(f"v_lshrrev_b32 v61, 1, {vr(V_LANE)}")
        k("v_and_b32 v61, 3, v61")
        k("v_lshl_add_u32 v62, v60, 5, v14")
        k("v_lshlrev_b32 v63, 2, v61")
        k("v_xor_b32 v62, v62, v63")
        k("v_lshlrev_b32 v63, 1, v60")
        k("v_xor_b32 v62, v62, v63")
        k("v_lshlrev_b32 v62, 4, v62")
        k(f"v_lshl_add_u32 {vr(RA)}, v61, 10, v62")
        k(f"v_add_u32 v15, 49152, {vr(RA)}")
        MLR = 14
        k(f"v_lshlrev_b32 {vr(MLR)}, 5, v14")
        k(f"v_add_u32 {vr(MLR)}, {self.ML_LDS}, {vr(MLR)}")
        GT, XR = 16, 28
        k.wait_vm(("P", 1))
        k("s_add_u32 s95, s95, 256")
        self.publish("s95")
        self.ts(14)
        for i in range(12):
            k(f"v_accvgpr_read_b32 {vr(GT+i)}, {ar(self.A_G+i)}")
            k(f"v_accvgpr_read_b32 {vr(XR+i)}, {ar(self.A_G+12+i)}")
        for i in range(12):
            k(f"v_add_f32 {vr(GT+i)}, {vr(GT+i)}, {vr(XR+i)}")
        for i in range(12):
            k(f"v_accvgpr_read_b32 {vr(XR+i)}, {ar(self.A_X+i)}")
        MLW = 63
        k(f"v_and_b32 {vr(MLW)}, 31, {vr(V_LANE)}")
        k(f"v_lshlrev_b32 {vr(MLW)}, 5, {vr(MLW)}")
        k(f"s_lshl_b32 s56, {sr(S_W)}, 3")
        k(f"s_add_u32 s56, s56, {self.ML_LDS}")
        k(f"v_add_u32 {vr(MLW)}, s56, {vr(MLW)}")
        PR = [64, 128]
        SR_ = [40, 48]

        def p_loads(sub):
            for s4 in range(4):
                k(f"s_add_u32 {sr(S_O)}, {sr(S_PS)}, {sub*65536 + s4*4096}")
                for i in range(4):
                    k.vmem(f"buffer_load_dwordx4 {vr(PR[sub]+4*(4*s4+i),4)}, {vr(V_L16)}, {sr(SWS,4)}, {sr(S_O)} "
                           f"offen offset:{i*1024} sc1", ("P", sub))
            k(f"s_add_u32 {sr(S_O)}, {sr(S_SS)}, {sub*8192}")
            for pw in range(4):
                k.vmem(f"buffer_load_dwordx2 {vr(SR_[sub]+2*pw,2)}, v8, {sr(SWS,4)}, {sr(S_O)} offen "
                       f"offset:{pw*256} sc1", ("S", sub))
        self.spin_at(12, 9, "s_mov_b64 exec, 0xff")
        p_loads(0)
        self.spin_at(12, 9, "s_mov_b64 exec, 0xff", off=256)
        p_loads(1)
        self.ts(12)
        F = [56, 58]

        def factor_ops(sub):
            S = SR_[sub]
            f0, f1 = F[sub], F[sub] + 1
            ops = []

            def e(line):
                ops.append(lambda: k(line))
            ops.append(lambda: k.wait_vm(("S", sub)))
            e(f"v_add_f32 {vr(S+1)}, {vr(S+1)}, {vr(S+3)}")
            e(f"v_add_f32 {vr(S+5)}, {vr(S+5)}, {vr(S+7)}")
            e(f"v_mov_b32 {vr(S+2)}, {vr(S)}")
            e(f"v_add_f32 {vr(S+1)}, {vr(S+1)}, {vr(S+5)}")
            e(f"v_permlane32_swap_b32 {vr(S+2)}, {vr(S)}")
            e(f"v_mov_b32 {vr(S+3)}, {vr(S+1)}")
            e(f"v_max_f32 {vr(S+4)}, {vr(S+2)}, {vr(S)}")
            e(f"v_permlane32_swap_b32 {vr(S+3)}, {vr(S+1)}")
            e(f"v_sub_f32 {vr(f0)}, {vr(S+2)}, {vr(S+4)}")
            e(f"v_sub_f32 {vr(f1)}, {vr(S)}, {vr(S+4)}")
            e(f"v_exp_f32 {vr(f0)}, {vr(f0)}")
            e(f"v_exp_f32 {vr(f1)}, {vr(f1)}")
            e(f"s_nop 0")
            e(f"v_mul_f32 {vr(S+5)}, {vr(f0)}, {vr(S+3)}")
            e(f"v_fmac_f32 {vr(S+5)}, {vr(f1)}, {vr(S+1)}")
            ops.append(lambda: k.ds(f"ds_write_b64 {vr(MLW)}, {vr(S+4,2)} offset:{sub*1024}", ("ml", sub)))
            return ops

        TMP = [[192, 208], [224, 240]]

        def scale_ops(sub, j):
            tile = 3 * sub + j
            t0, t1 = TMP[tile % 2]
            ops = []
            for g in range(4):
                for x in range(4 * g, 4 * g + 4):
                    ops.append(lambda x=x: k(f"v_mul_f32 {vr(t0+x)}, {vr(F[sub])}, {vr(t0+x)}"))
                for x in range(4 * g, 4 * g + 4):
                    ops.append(lambda x=x: k(f"v_fmac_f32 {vr(t0+x)}, {vr(F[sub]+1)}, {vr(t1+x)}"))
                ops.append(lambda g=g: k.ds(f"ds_write_b128 {vr(WA+g)}, {vr(t0+4*g,4)} offset:{tile*4096}",
                                            ("img", sub)))
            return ops

        def fin_ops(sub):
            ops = []

            def e(line):
                ops.append(lambda: k(line))
            C = SR_[sub]
            ML = 96
            for i in range(2):
                ops.append(lambda i=i: k.ds(f"ds_read_b128 {vr(ML+4*i,4)}, {vr(MLR)} offset:{sub*1024+16*i}",
                                            ("mlr", sub)))
            RB = [64, 80]

            def reads(j):
                R = RB[j % 2]
                tile = 3 * sub + j
                for src in range(4):
                    ops.append(lambda src=src: k.ds(
                        f"ds_read_b128 {vr(R+4*src,4)}, {vr(RA if src < 2 else 15)} "
                        f"offset:{(src%2)*24576+tile*4096}", ("fr", sub, j)))
            reads(0)
            ops.append(lambda: k.wait_lg(("mlr", sub)))
            e(f"v_max3_f32 {vr(C+4)}, {vr(ML)}, {vr(ML+2)}, {vr(ML+4)}")
            e(f"v_max_f32 {vr(C+4)}, {vr(C+4)}, {vr(ML+6)}")
            for w in range(4):
                e(f"v_sub_f32 {vr(C+w)}, {vr(ML+2*w)}, {vr(C+4)}")
            for w in range(4):
                e(f"v_exp_f32 {vr(C+w)}, {vr(C+w)}")
            e("s_nop 0")
            e(f"v_mul_f32 {vr(C+5)}, {vr(C)}, {vr(ML+1)}")
            for w in range(1, 4):
                e(f"v_fmac_f32 {vr(C+5)}, {vr(C+w)}, {vr(ML+2*w+1)}")
            e(f"v_rcp_f32 {vr(C+5)}, {vr(C+5)}")
            e("s_nop 0")
            for w in range(4):
                e(f"v_mul_f32 {vr(C+w)}, {vr(C+w)}, {vr(C+5)}")
            for j in range(3):
                R = RB[j % 2]
                tile = 3 * sub + j
                if j + 1 < 3:
                    reads(j + 1)
                ops.append(lambda j=j: k.wait_lg(("fr", sub, j)))
                for x in range(4):
                    e(f"v_mul_f32 {vr(R+x)}, {vr(C)}, {vr(R+x)}")
                for src in range(1, 4):
                    for x in range(4):
                        e(f"v_fmac_f32 {vr(R+x)}, {vr(C+src)}, {vr(R+4*src+x)}")
                xr = XR + 2 * tile
                e(f"v_lshlrev_b32 {vr(R+4)}, 16, {vr(xr)}")
                e(f"v_and_b32 {vr(R+5)}, {sr(S_MASK)}, {vr(xr)}")
                e(f"v_lshlrev_b32 {vr(R+6)}, 16, {vr(xr+1)}")
                e(f"v_and_b32 {vr(R+7)}, {sr(S_MASK)}, {vr(xr+1)}")
                for x in range(4):
                    e(f"v_fmac_f32 {vr(R+4+x)}, {vr(GT+4*j+x)}, {vr(R+x)}")
                e(f"v_cvt_pk_bf16_f32 {vr(xr)}, {vr(R+4)}, {vr(R+5)}")
                e(f"v_cvt_pk_bf16_f32 {vr(xr+1)}, {vr(R+6)}, {vr(R+7)}")

                def st(j=j, xr=xr):
                    if j == 0:
                        k(f"s_add_u32 s56, {sr(S_XO)}, {sub*32*1536}")
                    k.vmem(f"buffer_store_dwordx2 {vr(xr,2)}, {vr(GO)}, {sr(SOUT,4)}, s56 offen offset:{j*64}"
                           f"{self.out_policy}", "out")
                ops.append(st)
            return ops

        q_scale, q_other = [], factor_ops(0)
        groups = [(sub, j) for sub in range(2) for j in range(3)]
        k.wait_vm(("P", 0))
        for gi, (sub, j) in enumerate(groups):
            t0, t1 = TMP[gi % 2]
            if (sub, j) == (1, 0):
                k.wait_vm(("P", 1))
            for n in range(16):
                t, s = n % 2, n // 2
                ss = 8 * t + s
                tmp = (t0, t1)[t]
                cc = "0" if s == 0 else vr(tmp, 16)
                k(f"v_mfma_f32_32x32x16_bf16 {vr(tmp,16)}, {ar((j*16+ss)*4,4)}, {vr(PR[sub]+4*ss,4)}, {cc}")
                if n == 3:
                    if gi >= 1:
                        q_scale += scale_ops(*groups[gi - 1])
                    if gi == 3:
                        def bar0():
                            k.wait_lg(("img", 0))
                            k("s_barrier")
                        q_other.append(bar0)
                        q_other += fin_ops(0)
                if gi == 2 and n == 12:
                    q_other += factor_ops(1)
                m = 3 if gi < 3 else 5
                while (q_scale or q_other) and m:
                    (q_scale or q_other).pop(0)()
                    m -= 1
            while q_scale:
                q_scale.pop(0)()
            if gi in (0, 2):
                while q_other:
                    q_other.pop(0)()
        while q_other:
            q_other.pop(0)()
        for f in scale_ops(1, 2):
            f()
        k.wait_lg_all()
        k("s_barrier")
        for f in fin_ops(1):
            f()

    def build(self):
        k = self.k
        self.prologue()
        la, lw, lb = "L_A_gemv", "L_A_w", "L_A_done"
        k(f"s_cmp_ge_u32 {sr(S_IDX)}, 24")
        k(f"s_cbranch_scc1 {la}")
        if "noln" not in self.opts:
            self.x_loads()
        self.srd(SQKV, 8, 768 * 2304 * 2, bias=4096)
        sv = list(k.vm)
        k(f"s_cmp_ge_u32 {sr(S_XCD)}, 4")
        k(f"s_cbranch_scc1 {lw}")
        self.phase_a_gemm(0)
        k(f"s_branch {lb}")
        k.label(lw)
        k.reset_counts()
        k.vm = list(sv)
        self.srd(SWO, 10, 768 * 768 * 2, bias=4096)
        self.phase_a_gemm(1)
        k(f"s_branch {lb}")
        k.label(la)
        k.reset_counts()
        if "nogemv" in self.opts:
            k("s_branch L_fin")
        self.srd(SC, 6, 2 * 768 * 2)
        self.srd(SWM, 12, 768 * 4608 * 2)
        self.x_loads()
        self.phase_a_gemv()
        k.label(lb)
        k.reset_counts()
        self.srd(SOUT, 14, 2 * 1024 * 768 * 2)
        if self.stop_after == "A":
            k("s_waitcnt vmcnt(0)")
            np_ = k.newlabel("np")
            k(f"s_cmp_eq_u32 {sr(S_PEND)}, 0")
            k(f"s_cbranch_scc1 {np_}")
            self.publish(sr(S_PEND))
            k.label(np_)
        else:
            self.phase_b_pre()
            self.phase_b()
            if self.stop_after == "B":
                k.wait_vm_all()
                self.publish(sr(S_PEND))
                self.ts(10)
            else:
                self.phase_c()
                if self.stop_after != "C":
                    self.phase_d()
                else:
                    k.wait_vm_all()
                    k("s_add_u32 s95, s95, 256")
                    self.publish("s95")
        k.label("L_fin")
        k.wait_vm_all()
        self.ts(15)
        self.ts_dump()
        k.label("L_end")
        k("s_endpgm")
        k.label("L_codeend")
        body = k.finalize()
        hdr = f"""; DiT adaLN attention block: persistent single-launch kernel (generated by work/gen2.py)
; @launch grid=(256,1,1) block=(256,1,1) lds=163840
.amdgcn_target "amdgcn-amd-amdhsa--gfx950"
.text
.globl {NAME}_kernel
.p2align 8
.type {NAME}_kernel,@function
{NAME}_kernel:
"""
        ftr = f""".section .rodata,"a"
.p2align 6
.amdhsa_kernel {NAME}_kernel
  .amdhsa_next_free_vgpr 512
  .amdhsa_next_free_sgpr 102
  .amdhsa_accum_offset 256
  .amdhsa_group_segment_fixed_size 0
  .amdhsa_kernarg_size 64
  .amdhsa_user_sgpr_count 2
  .amdhsa_user_sgpr_kernarg_segment_ptr 1
  .amdhsa_system_sgpr_workgroup_id_x 1
  .amdhsa_float_denorm_mode_32 3
.end_amdhsa_kernel
"""
        return hdr + body + ftr


if __name__ == "__main__":
    import argparse
    ap = argparse.ArgumentParser()
    ap.add_argument("-o", default=f"cdna_kernels/{NAME}.s")
    ap.add_argument("--stop", default=None)
    ap.add_argument("--ts", action="store_true")
    ap.add_argument("--opt", action="append", default=[])
    a = ap.parse_args()
    g = Gen(stop_after=a.stop, ts=a.ts, opts=a.opt)
    s = g.build()
    open(a.o, "w").write(s)
    print("wrote", a.o, len(s), "bytes;", g.k.nops_inserted, "nop sites,", g.k.nop_states, "states")
```

```python
import sys
import os
import struct
sys.path.insert(0, os.path.dirname(os.path.abspath(__file__)))
from asmlib import Asm, vr, ar, sr

NAME = "standalone__dit_adaln_block__diffusion"

WTS_OFF = 0x000000
WB_STRIDE = 16 * 51 * 3072
XN_OFF = 0x500000
T_OFF = 0x800000
VT_OFF = 0xB00000
P_OFF = 0xE00000
ST_OFF = 0x1200000
MOD_OFF = 0x1280000
MODT_OFF = 0x1290000
FL_OFF = 0x12A0000
XF_OFF = FL_OFF + 0x0000
MF_OFF = FL_OFF + 0x2000
WF_OFF = FL_OFF + 0x3000
TF_OFF = FL_OFF + 0x5000
VF_OFF = FL_OFF + 0x6000
PF_OFF = FL_OFF + 0x7000
TS_OFF = 0x12B0000
WS_USED = 0x1400000

QSCALE = 0.036084391824351615 * 1.4426950408889634

S_WG = 2
S_W = 3
SX, SC, SQKV, SWO, SWM, SOUT, SDBG, SWS = 20, 24, 28, 32, 36, 40, 44, 48
S_XCD, S_IDX = 52, 53
S_R, S_CB = 54, 55
S_TS = 70
S_CLK = 86
S_SPIN = 88
S_PEND = 89
S_WISS = 90
S_MASK = 91
S_LINK = 92
S_PC = 96

V_LANE, V_L16, V_N = 0, 1, 2

SPIN_MAX = 0x40000
LNBUF = 143360
GT_LDS = 147456


def f32hex(x):
    return "0x%08x" % struct.unpack("<I", struct.pack("<f", x))[0]


class Gen:
    def __init__(self, stop_after=None, ts=False, opts=()):
        self.opts = set(opts)
        self.k = Asm()
        self.stop_after = stop_after
        self.ts_on = ts
        self.out_policy = ""
        for o in self.opts:
            if o.startswith("out="):
                self.out_policy = " " + o[4:].replace("+", " ")

    def ts(self, i):
        if not self.ts_on:
            return
        k = self.k
        k(f"s_memrealtime {sr(S_CLK,2)}")
        k("s_waitcnt lgkmcnt(0)")
        k.lg = []
        k(f"s_mov_b32 {sr(S_TS+i)}, {sr(S_CLK)}")

    def ts_dump(self):
        if not self.ts_on:
            return
        k = self.k
        k(f"s_lshl_b32 s56, {sr(S_WG)}, 2")
        k(f"s_add_u32 s56, s56, {sr(S_W)}")
        k("s_lshl_b32 s56, s56, 6")
        k(f"s_add_u32 s56, s56, {TS_OFF}")
        k("v_mov_b32 v4, 0")
        for j in range(16):
            k(f"v_writelane_b32 v4, {sr(S_TS+j)}, {j}")
        k(f"v_lshlrev_b32 v5, 2, {vr(V_LANE)}")
        k("s_mov_b64 exec, 0xffff")
        k.vmem(f"buffer_store_dword v4, v5, {sr(SWS,4)}, s56 offen")
        if "dbg" in self.opts:
            k(f"v_readfirstlane_b32 s57, {vr(V_N)}")
            k("v_cmp_ne_u32 vcc, 0, v4")
            k("v_subrev_u32 v4, s57, v4")
            k("v_cndmask_b32 v4, 0, v4, vcc")
            k("v_max_i32 v4, 0, v4")
            k("s_mov_b64 exec, 0xfffc")
            k.vmem(f"buffer_atomic_umax v4, v5, {sr(SDBG,4)}, 0 offen sc1")
        k("s_mov_b64 exec, -1")

    def publish(self, soff):
        k = self.k
        k("s_mov_b64 exec, 1")
        k.vmem(f"buffer_store_dwordx2 {vr(V_N,2)}, off, {sr(SWS,4)}, {soff} sc1", "flag")
        k("s_mov_b64 exec, -1")

    def poll_issue(self, vdst, voff, mask, tag):
        k = self.k
        k(f"s_mov_b64 exec, {mask}")
        k.vmem(f"buffer_load_dwordx2 {vr(vdst,2)}, {vr(voff)}, {sr(SWS,4)}, 0 offen sc1", tag)
        k("s_mov_b64 exec, -1")

    def poll_eval(self, vdst, mask):
        k = self.k
        k(f"s_mov_b64 exec, {mask}")
        k(f"v_cmp_ne_u64 vcc, {vr(vdst,2)}, {vr(V_N,2)}")
        k("s_mov_b64 exec, -1")

    def spin(self, vdst, voff, mask):
        k = self.k
        loop = k.newlabel("spin")
        done = k.newlabel("spun")
        k(f"s_mov_b32 {sr(S_SPIN)}, 0")
        k(f"s_mov_b64 exec, {mask}")
        k.label(loop)
        k(f"buffer_load_dwordx2 {vr(vdst,2)}, {vr(voff)}, {sr(SWS,4)}, 0 offen sc1")
        k("s_waitcnt vmcnt(0)")
        k(f"v_cmp_ne_u64 vcc, {vr(vdst,2)}, {vr(V_N,2)}")
        k(f"s_cbranch_vccz {done}")
        k(f"s_add_u32 {sr(S_SPIN)}, {sr(S_SPIN)}, 1")
        k(f"s_cmp_lt_u32 {sr(S_SPIN)}, {SPIN_MAX}")
        k(f"s_cbranch_scc1 {loop}")
        k.label(done)
        k("s_mov_b64 exec, -1")
        k.vm = []

    def nonce_issue(self):
        self.k.vmem(f"buffer_load_dwordx2 {vr(V_N,2)}, off, {sr(SDBG,4)}, 0 sc1", "nonce")

    def nonce_check(self):
        k = self.k
        ok = k.newlabel("nok")
        loop = k.newlabel("nsp")
        k(f"v_cmp_eq_u32 vcc, 0, {vr(V_N)}")
        k(f"s_cbranch_vccz {ok}")
        k(f"s_mov_b32 {sr(S_SPIN)}, 0")
        k.label(loop)
        k(f"buffer_load_dwordx2 {vr(V_N,2)}, off, {sr(SDBG,4)}, 0 sc1")
        k("s_waitcnt vmcnt(0)")
        k(f"v_cmp_eq_u32 vcc, 0, {vr(V_N)}")
        k(f"s_cbranch_vccz {ok}")
        k(f"s_add_u32 {sr(S_SPIN)}, {sr(S_SPIN)}, 1")
        k(f"s_cmp_lt_u32 {sr(S_SPIN)}, {SPIN_MAX}")
        k(f"s_cbranch_scc1 {loop}")
        k.label(ok)

    def srd(self, s, ptr, nbytes, bias=0):
        k = self.k
        if bias:
            k(f"s_sub_u32 {sr(s)}, {sr(ptr)}, {bias}")
            k(f"s_subb_u32 {sr(s+1)}, {sr(ptr+1)}, 0")
        else:
            k(f"s_mov_b32 {sr(s)}, {sr(ptr)}")
            k(f"s_mov_b32 {sr(s+1)}, {sr(ptr+1)}")
        k(f"s_mov_b32 {sr(s+2)}, {nbytes + bias}")
        k(f"s_mov_b32 {sr(s+3)}, 0x20000")

    def prologue(self):
        k = self.k
        k(f"s_cmp_ge_u32 {sr(S_WG)}, 256")
        k("s_cbranch_scc1 L_end")
        k("s_load_dwordx16 s[4:19], s[0:1], 0")
        k(f"s_memrealtime {sr(S_CLK,2)}")
        k(f"s_getpc_b64 {sr(S_PC,2)}")
        k.label("L_pc")
        k("v_lshrrev_b32 v4, 6, v0")
        k(f"v_and_b32 {vr(V_LANE)}, 63, v0")
        k(f"v_readfirstlane_b32 {sr(S_W)}, v4")
        k(f"v_lshlrev_b32 {vr(V_L16)}, 4, {vr(V_LANE)}")
        k(f"s_sub_u32 {sr(S_PC)}, {sr(S_PC)}, L_pc-{NAME}_kernel")
        k(f"s_subb_u32 {sr(S_PC+1)}, {sr(S_PC+1)}, 0")
        k(f"s_mov_b32 {sr(S_PC+2)}, L_codeend-{NAME}_kernel")
        k(f"s_mov_b32 {sr(S_PC+3)}, 0x20000")
        k(f"s_and_b32 {sr(S_XCD)}, {sr(S_WG)}, 7")
        k(f"s_lshr_b32 {sr(S_IDX)}, {sr(S_WG)}, 3")
        k(f"s_mov_b32 {sr(S_MASK)}, 0xffff0000")
        k(f"s_lshl_b32 s56, {sr(S_WG)}, 2")
        k(f"s_add_u32 s56, s56, {sr(S_W)}")
        k("s_mul_i32 s56, s56, 3072")
        k(f"v_lshlrev_b32 v4, 3, {vr(V_LANE)}")
        k("s_waitcnt lgkmcnt(0)")
        self.srd(SX, 4, 2 * 1024 * 768 * 2)
        self.srd(SWS, 18, WS_USED)
        self.srd(SDBG, 16, 256)
        skip = k.newlabel("nn")
        k(f"s_or_b32 s57, {sr(S_WG)}, {sr(S_W)}")
        k("s_cmp_eq_u32 s57, 0")
        k(f"s_cbranch_scc0 {skip}")
        k(f"s_or_b32 s57, {sr(S_CLK)}, 1")
        k(f"v_mov_b32 {vr(V_N)}, s57")
        k(f"v_mov_b32 {vr(V_N+1)}, {sr(S_CLK+1)}")
        k("s_mov_b64 exec, 1")
        k(f"buffer_store_dwordx2 {vr(V_N,2)}, off, {sr(SDBG,4)}, 0 sc1")
        k("s_mov_b64 exec, -1")
        k.label(skip)
        if self.ts_on:
            k(f"s_mov_b32 {sr(S_TS)}, {sr(S_CLK)}")
            for j in range(1, 16):
                k(f"s_mov_b32 {sr(S_TS+j)}, 0")
            if "tsA" in self.opts:
                self.ts(4)

    VX = 64

    def x_loads(self):
        k = self.k
        for i in range(2):
            for q in range(3):
                off = i * 1536 + q * 512
                k.vmem(f"buffer_load_dwordx2 {vr(self.VX+6*i+2*q,2)}, v4, {sr(SX,4)}, s56 offen offset:{off} nt",
                       "x")

    def roles(self):
        k = self.k
        k(f"s_lshr_b32 s57, {sr(S_XCD)}, 1")
        k("s_lshl_b32 s57, s57, 2")
        k(f"s_and_b32 s58, {sr(S_IDX)}, 3")
        k(f"s_add_u32 {sr(S_R)}, s57, s58")
        k(f"s_and_b32 s57, {sr(S_XCD)}, 1")
        k("s_lshl_b32 s57, s57, 3")
        k(f"s_lshr_b32 s58, {sr(S_IDX)}, 2")
        k(f"s_add_u32 {sr(S_CB)}, s57, s58")

    def code_prefetch(self):
        k = self.k
        k(f"s_lshl_b32 s56, {sr(S_IDX)}, 2")
        k(f"s_add_u32 s56, s56, {sr(S_W)}")
        k("s_lshl_b32 s56, s56, 10")
        k(f"v_add_u32 v148, s56, {vr(V_L16)}")
        k.vmem(f"buffer_load_dwordx4 v[148:151], v148, {sr(S_PC,4)}, 0 offen", "pf")

    def ln8_ops(self):
        k = self.k
        VX, Y = self.VX, 76
        T0 = 112
        p1, p2 = [], []

        def e(line, lst=p1):
            lst.append(lambda: k(line))
        p1.append(lambda: k.wait_vm("x"))
        for i in range(2):
            for n in range(6):
                e(f"v_lshlrev_b32 {vr(Y+12*i+2*n)}, 16, {vr(VX+6*i+n)}")
                e(f"v_and_b32 {vr(Y+12*i+2*n+1)}, {sr(S_MASK)}, {vr(VX+6*i+n)}")
        SM = T0
        for i in range(2):
            e(f"v_pk_add_f32 {vr(SM+2*i,2)}, {vr(Y+12*i,2)}, {vr(Y+12*i+2,2)}")
        for n in range(2, 6):
            for i in range(2):
                e(f"v_pk_add_f32 {vr(SM+2*i,2)}, {vr(SM+2*i,2)}, {vr(Y+12*i+2*n,2)}")
        for i in range(2):
            e(f"v_add_f32 {vr(SM+2*i)}, {vr(SM+2*i)}, {vr(SM+2*i+1)}")

        def wave_sum(extra):
            extra = list(extra)
            for mod in ("quad_perm:[1,0,3,2] row_mask:0xf bank_mask:0xf",
                        "quad_perm:[2,3,0,1] row_mask:0xf bank_mask:0xf",
                        "row_half_mirror row_mask:0xf bank_mask:0xf",
                        "row_mirror row_mask:0xf bank_mask:0xf",
                        "row_bcast:15 row_mask:0xa bank_mask:0xf",
                        "row_bcast:31 row_mask:0xc bank_mask:0xf"):
                for i in range(2):
                    e(f"v_add_f32_dpp {vr(SM+2*i)}, {vr(SM+2*i)}, {vr(SM+2*i)} {mod}")
                if extra:
                    e(extra.pop(0))
            for x in extra:
                e(x)
        WA = T0 + 4
        A, B_, C, D_ = T0 + 6, T0 + 7, T0 + 8, T0 + 9
        wave_sum([f"v_lshrrev_b32 {vr(A)}, 2, {vr(V_LANE)}",
                  f"v_and_b32 {vr(B_)}, 1, {vr(V_LANE)}",
                  f"v_lshl_or_b32 {vr(C)}, {vr(A)}, 1, {vr(B_)}",
                  f"v_and_b32 {vr(D_)}, 7, {vr(C)}",
                  f"v_lshlrev_b32 {vr(C)}, 7, {vr(C)}",
                  f"v_and_b32 {vr(B_)}, 2, {vr(V_LANE)}",
                  f"v_lshl_add_u32 {vr(C)}, {vr(B_)}, 2, {vr(C)}",
                  f"v_add_u32 {vr(C)}, {LNBUF}, {vr(C)}",
                  f"s_lshl_b32 s57, {sr(S_W)}, 1",
                  f"s_mov_b32 s58, {f32hex(1.0/768)}"])
        for i in range(2):
            e(f"v_mul_f32 {vr(SM+2*i)}, s58, {vr(SM+2*i)}")
        e(f"v_xor_b32 {vr(B_)}, s57, {vr(D_)}")
        e(f"v_lshl_add_u32 {vr(WA)}, {vr(B_)}, 4, {vr(C)}")
        for i in range(2):
            e(f"v_readlane_b32 {sr(60+2*i)}, {vr(SM+2*i)}, 63")
        e(f"v_xor_b32 {vr(B_)}, 1, {vr(B_)}")
        e(f"v_lshl_add_u32 {vr(WA+1)}, {vr(B_)}, 4, {vr(C)}")
        for n in range(6):
            for i in range(2):
                e(f"v_pk_add_f32 {vr(Y+12*i+2*n,2)}, {vr(Y+12*i+2*n,2)}, {sr(60+2*i,2)} "
                  f"op_sel_hi:[1,0] neg_lo:[0,1] neg_hi:[0,1]")
        for i in range(2):
            e(f"v_pk_mul_f32 {vr(SM+2*i,2)}, {vr(Y+12*i,2)}, {vr(Y+12*i,2)}")
        for n in range(1, 6):
            for i in range(2):
                e(f"v_pk_fma_f32 {vr(SM+2*i,2)}, {vr(Y+12*i+2*n,2)}, {vr(Y+12*i+2*n,2)}, {vr(SM+2*i,2)}")
        for i in range(2):
            e(f"v_add_f32 {vr(SM+2*i)}, {vr(SM+2*i)}, {vr(SM+2*i+1)}")
        ROW, SEG, RA_, GO = T0 + 10, T0 + 11, T0 + 12, T0 + 13
        wave_sum([f"v_and_b32 {vr(ROW)}, 7, {vr(V_LANE)}",
                  f"v_lshrrev_b32 {vr(SEG)}, 3, {vr(V_LANE)}",
                  f"v_xor_b32 {vr(RA_)}, {vr(ROW)}, {vr(SEG)}",
                  f"v_lshlrev_b32 {vr(RA_)}, 4, {vr(RA_)}",
                  f"v_lshl_add_u32 {vr(RA_)}, {vr(SEG)}, 7, {vr(RA_)}",
                  f"v_mov_b32 {vr(B_)}, {f32hex(1e-5)}"])
        for i in range(2):
            e(f"v_fma_f32 {vr(SM+2*i)}, {vr(SM+2*i)}, s58, {vr(B_)}")
        for i in range(2):
            e(f"v_rsq_f32 {vr(SM+2*i)}, {vr(SM+2*i)}")
        e(f"s_mul_i32 s57, {sr(S_W)}, 3072")
        e(f"s_add_u32 s57, s57, {LNBUF}")
        e(f"v_add_u32 {vr(RA_)}, s57, {vr(RA_)}")
        for i in range(2):
            e(f"v_readlane_b32 {sr(60+2*i)}, {vr(SM+2*i)}, 63")
        e(f"v_lshrrev_b32 {vr(GO)}, 1, {vr(SEG)}")
        e(f"v_lshlrev_b32 {vr(GO)}, 10, {vr(GO)}")
        e(f"v_and_b32 {vr(SEG)}, 1, {vr(SEG)}")
        for n in range(6):
            for i in range(2):
                e(f"v_pk_mul_f32 {vr(Y+12*i+2*n,2)}, {vr(Y+12*i+2*n,2)}, {sr(60+2*i,2)} op_sel_hi:[1,0]")
        e(f"v_lshl_add_u32 {vr(GO)}, {vr(SEG)}, 9, {vr(GO)}")
        e(f"v_lshl_add_u32 {vr(GO)}, {vr(ROW)}, 4, {vr(GO)}")
        for i in range(2):
            for n in range(6):
                e(f"v_cvt_pk_bf16_f32 {vr(VX+6*i+n)}, {vr(Y+12*i+2*n)}, {vr(Y+12*i+2*n+1)}")
            for q in range(3):
                p1.append(lambda i=i, q=q: k.ds(f"ds_write_b64 {vr(WA+i)}, {vr(VX+6*i+2*q,2)} offset:{q*4096}", "lnw"))
        e(f"s_lshr_b32 s57, {sr(S_WG)}, 2")
        e("s_mul_i32 s57, s57, 49152")
        e(f"s_mul_i32 s58, {sr(S_W)}, 12288")
        e("s_add_u32 s57, s57, s58")
        e(f"s_and_b32 s58, {sr(S_WG)}, 3")
        e("s_lshl_b32 s58, s58, 7")
        e("s_add_u32 s57, s57, s58")
        e(f"s_add_u32 s57, s57, {XN_OFF}")
        RB = T0 + 16
        for i in range(3):
            p2.append(lambda i=i: k.ds(f"ds_read_b128 {vr(RB+4*i,4)}, {vr(RA_)} offset:{i*1024}", ("ln", i)))
        for i in range(3):
            def st(i=i):
                k.wait_lg(("ln", i))
                k.vmem(f"buffer_store_dwordx4 {vr(RB+4*i,4)}, {vr(GO)}, {sr(SWS,4)}, s57 offen sc1", "xn")
                if i < 2:
                    k("s_add_u32 s57, s57, 4096")
            p2.append(st)
        return p1, p2

    def ln8(self, fillers=(), every=8):
        k = self.k
        p1, p2 = self.ln8_ops()
        fillers = list(fillers)
        for n, f in enumerate(p1):
            f()
            if fillers and n % every == every - 1:
                fillers.pop(0)()
        while fillers:
            fillers.pop(0)()
        k.wait_lg("lnw")
        k("s_barrier")
        for f in p2:
            f()

    def xf_offset(self, dst):
        k = self.k
        k(f"s_lshl_b32 {dst}, {sr(S_WG)}, 2")
        k(f"s_add_u32 {dst}, {dst}, {sr(S_W)}")
        k(f"s_lshl_b32 {dst}, {dst}, 3")
        k(f"s_add_u32 {dst}, {dst}, {XF_OFF}")

    def xf_poll_addr(self, v):
        k = self.k
        k(f"s_lshl_b32 s57, {sr(S_R)}, 2")
        k(f"s_add_u32 s57, s57, {sr(S_W)}")
        k("s_lshl_b32 s57, s57, 7")
        k(f"s_add_u32 s57, s57, {XF_OFF}")
        k(f"v_lshlrev_b32 {vr(v)}, 3, {vr(V_LANE)}")
        k(f"v_add_u32 {vr(v)}, s57, {vr(v)}")

    def phase_a_gemm(self, mat):
        k = self.k
        S_CBM, S_IB, S_M0A, S_M0B, S_OA, S_OB, S_II, S_KH, S_KS = 64, 65, 66, 67, 68, 69, 94, 95, 59
        S_A0, S_B0 = 60, 61
        k(f"s_and_b32 s57, {sr(S_XCD)}, 1")
        k("s_lshl_b32 s57, s57, 2")
        k(f"s_and_b32 s58, {sr(S_IDX)}, 3")
        k(f"s_add_u32 {sr(S_CBM)}, s58, s57")
        k(f"s_lshr_b32 s57, {sr(S_XCD)}, 1")
        k("s_and_b32 s57, s57, 1")
        k("s_mul_i32 s57, s57, 6")
        k(f"s_lshr_b32 s62, {sr(S_IDX)}, 2")
        k(f"s_add_u32 {sr(S_IB)}, s62, s57")
        k("s_mul_i32 s58, s58, 3")
        k("s_lshl_b32 s62, s62, 1")
        k(f"s_add_u32 {sr(S_KS)}, s58, s62")
        k(f"s_cmp_ge_u32 {sr(S_KS)}, 12")
        k("s_cselect_b32 s58, 12, 0")
        k(f"s_sub_u32 {sr(S_KS)}, {sr(S_KS)}, s58")
        if "norot" in self.opts:
            k(f"s_mov_b32 {sr(S_KS)}, 0")
        k(f"s_and_b32 {sr(S_II)}, {sr(S_W)}, 1")
        k(f"s_lshr_b32 {sr(S_KH)}, {sr(S_W)}, 1")
        BIAS = 4096
        k(f"s_mul_i32 {sr(S_A0)}, {sr(S_IB)}, {64*4608}")
        k(f"s_mul_i32 s57, {sr(S_W)}, {16*4608}")
        k(f"s_add_u32 {sr(S_A0)}, {sr(S_A0)}, s57")
        k(f"s_add_u32 {sr(S_A0)}, {sr(S_A0)}, {BIAS + (3072 if mat else 0)}")
        VA, VB = 4, 6
        k(f"v_lshrrev_b32 v9, 3, {vr(V_LANE)}")
        k(f"v_and_b32 v10, 7, {vr(V_LANE)}")
        k(f"v_lshrrev_b32 v11, 4, {vr(V_LANE)}")
        k("v_mul_u32_u24 v12, 4608, v9")
        k("v_xor_b32 v13, v10, v11")
        k("v_xor_b32 v14, 4, v13")
        k("v_lshl_add_u32 v13, v13, 4, v12")
        k("v_lshl_add_u32 v14, v14, 4, v12")
        k(f"v_add_u32 {vr(VA)}, {sr(S_A0)}, v13")
        k(f"s_add_u32 s57, {sr(S_A0)}, {8*4608 - 1024}")
        k(f"v_add_u32 {vr(VA+1)}, s57, v14")
        if mat == 0:
            k(f"s_mul_i32 {sr(S_B0)}, {sr(S_CBM)}, {96*4608}")
            k(f"s_mul_i32 s57, {sr(S_W)}, {24*4608}")
            k(f"s_add_u32 {sr(S_B0)}, {sr(S_B0)}, s57")
            k(f"s_add_u32 {sr(S_B0)}, {sr(S_B0)}, {1536 + BIAS}")
            k(f"s_cmp_eq_u32 {sr(S_II)}, 0")
            k("s_cselect_b64 vcc, -1, 0")
            k("v_cndmask_b32 v15, v14, v13, vcc")
            k("v_cndmask_b32 v9, v13, v14, vcc")
            k(f"v_add_u32 {vr(VB)}, {sr(S_B0)}, v15")
            k(f"s_add_u32 s57, {sr(S_B0)}, {8*4608 - 1024}")
            k(f"v_add_u32 {vr(VB+1)}, s57, v9")
            k(f"s_add_u32 s57, {sr(S_B0)}, {16*4608 - 2048}")
            k(f"v_add_u32 {vr(VB+2)}, s57, v15")
        else:
            k(f"v_lshrrev_b32 v15, 2, {vr(V_LANE)}")
            k("v_mul_u32_u24 v15, 1536, v15")
            k(f"v_and_b32 v9, 3, {vr(V_LANE)}")
            k("v_lshl_add_u32 v15, v9, 4, v15")
            k(f"s_mul_i32 {sr(S_B0)}, {sr(S_CBM)}, 192")
            for i in range(3):
                k(f"s_mul_i32 s57, {sr(S_W)}, 3")
                k(f"s_add_u32 s57, s57, {i}")
                k("s_lshr_b32 s58, s57, 2")
                k("s_and_b32 s57, s57, 3")
                k(f"s_mul_i32 s57, s57, {16*1536}")
                k("s_lshl_b32 s58, s58, 6")
                k("s_add_u32 s57, s57, s58")
                k(f"s_add_u32 s57, s57, {sr(S_B0)}")
                k(f"s_add_u32 s57, s57, {BIAS - 1024*i}")
                k(f"v_add_u32 {vr(VB+i)}, s57, v15")
        k(f"s_lshl_b32 {sr(S_M0A)}, {sr(S_W)}, 11")
        k(f"s_mul_i32 {sr(S_M0B)}, {sr(S_W)}, 3072")
        k(f"s_add_u32 {sr(S_M0B)}, {sr(S_M0B)}, 8192")
        SB = SQKV if mat == 0 else SWO

        def issue_ops(st):
            sl = st % 7
            ops = []

            def a0():
                k(f"s_lshl_b32 {sr(S_OA)}, {sr(S_KS)}, 7")
                if mat:
                    k(f"s_mul_i32 {sr(S_OB)}, {sr(S_KS)}, {64*1536}")
                k(f"s_add_u32 m0, {sr(S_M0A)}, {sl*20480}")
                k.vmem(f"buffer_load_dwordx4 {vr(VA)}, {sr(SQKV,4)}, {sr(S_OA)} offen lds", ("A", st))

            def a1():
                k.vmem(f"buffer_load_dwordx4 {vr(VA+1)}, {sr(SQKV,4)}, {sr(S_OA)} offen offset:1024 lds", ("A", st))
            ob = S_OB if mat else S_OA

            def b(i):
                def f():
                    if i == 0:
                        k(f"s_add_u32 m0, {sr(S_M0B)}, {sl*20480}")
                    k.vmem(f"buffer_load_dwordx4 {vr(VB+i)}, {sr(SB,4)}, {sr(ob)} offen offset:{i*1024} lds",
                           ("A", st))
                    if i == 2:
                        k(f"s_add_u32 {sr(S_KS)}, {sr(S_KS)}, 1")
                        k(f"s_cmp_eq_u32 {sr(S_KS)}, 12")
                        k(f"s_cselect_b32 {sr(S_KS)}, 0, {sr(S_KS)}")
                return f
            return [a0, a1, b(0), b(1), b(2)]

        def issue(st):
            for f in issue_ops(st):
                f()

        if "dmaonly" in self.opts:
            for st in range(12):
                issue(st)
                if st in (0, 1, 2, 3, 4, 6, 8, 11):
                    self.ts(5 + (0, 1, 2, 3, 4, 6, 8, 11).index(st))
            k.wait_vm_all()
            self.ts(13)
            k("s_branch L_fin")
        for st in range(3):
            issue(st)
        if "tsA" in self.opts:
            self.ts(5)
        self.roles()
        RA, RB = 100, 106
        k(f"v_and_b32 v20, 31, {vr(V_LANE)}")
        k(f"v_lshrrev_b32 v21, 5, {vr(V_LANE)}")
        k("v_lshrrev_b32 v22, 1, v20")
        k("v_and_b32 v22, 7, v22")
        k(f"s_lshl_b32 s57, {sr(S_KH)}, 2")
        k("v_add_u32 v23, s57, v21")
        for kk in range(2):
            k(f"v_add_u32 v24, {2*kk}, v23")
            k("v_xor_b32 v24, v24, v22")
            k("v_lshlrev_b32 v24, 4, v24")
            k("v_lshl_add_u32 v24, v20, 7, v24")
            k(f"s_lshl_b32 s57, {sr(S_II)}, 12")
            k(f"v_add_u32 {vr(RA+kk*3)}, s57, v24")
            k(f"v_add_u32 {vr(RA+kk*3+1)}, 61440, {vr(RA+kk*3)}")
            k(f"v_add_u32 {vr(RA+kk*3+2)}, 122880, {vr(RA+kk*3)}")
            if mat == 0:
                k(f"v_add_u32 {vr(RB+kk*3)}, 8192, v24")
                k(f"v_add_u32 {vr(RB+kk*3+1)}, {8192+61440}, v24")
                k(f"v_add_u32 {vr(RB+kk*3+2)}, {8192+122880}, v24")
        if mat:
            k(f"v_lshrrev_b32 v24, 2, {vr(V_LANE)}")
            k("v_and_b32 v24, 3, v24")
            k("v_lshl_add_u32 v24, v21, 3, v24")
            k("v_lshlrev_b32 v24, 6, v24")
            k(f"v_lshrrev_b32 v25, 4, {vr(V_LANE)}")
            k("v_and_b32 v25, 1, v25")
            k("v_lshl_add_u32 v24, v25, 5, v24")
            k(f"v_and_b32 v25, 3, {vr(V_LANE)}")
            k("v_lshl_add_u32 v24, v25, 3, v24")
            k(f"s_lshl_b32 s57, {sr(S_KH)}, 11")
            k("s_add_u32 s57, s57, 8192")
            k(f"v_add_u32 {vr(RB)}, s57, v24")
            k(f"v_add_u32 {vr(RB+1)}, 61440, {vr(RB)}")
            k(f"v_add_u32 {vr(RB+2)}, 122880, {vr(RB)}")
        if "noln" in self.opts:
            self.code_prefetch()
            issue(3)
            issue(4)
        else:
            self.ln8(issue_ops(3) + [self.code_prefetch] + issue_ops(4), every=10)
            self.ts(1)
            self.nonce_issue()
        ACC = 16

        def FA(s, kk):
            return 32 * s + 4 * kk

        def FB(s, kk, j):
            return 32 * s + 8 + 12 * kk + 4 * j

        def read_ops(st):
            sl = st % 7
            win, so = sl // 3, (sl % 3) * 20480
            s = st & 1
            ops = []
            for kk in range(2):
                ops.append(lambda kk=kk: k.ds(f"ds_read_b128 {ar(FA(s,kk),4)}, {vr(RA+kk*3+win)} offset:{so}",
                                               ("r", st, kk)))
                for j in range(3):
                    d = FB(s, kk, j)
                    if mat == 0:
                        ops.append(lambda kk=kk, j=j, d=d: k.ds(
                            f"ds_read_b128 {ar(d,4)}, {vr(RB+kk*3+win)} offset:{so+j*4096}", ("r", st, kk)))
                    else:
                        for t in range(2):
                            ops.append(lambda kk=kk, j=j, d=d, t=t: k.ds(
                                f"ds_read_b64_tr_b16 {ar(d+2*t,2)}, {vr(RB+win)} "
                                f"offset:{so+j*4096+(16*kk+4*t)*64}", ("r", st, kk)))
            return ops
        MT, MA = 112, 128

        def mt_addr():
            k(f"s_lshl_b32 s57, {sr(S_II)}, 1")
            k(f"s_add_u32 s57, s57, {sr(S_KH)}")
            k("s_lshl_b32 s57, s57, 4")
            k(f"s_lshl_b32 s58, {sr(S_IB)}, 6")
            k("s_add_u32 s57, s57, s58")
            k(f"v_and_b32 {vr(MA)}, 15, {vr(V_LANE)}")
            k(f"v_add_u32 {vr(MA)}, s57, {vr(MA)}")
            k(f"v_and_b32 {vr(MA+1)}, 16, {vr(V_LANE)}")
            k(f"v_mul_u32_u24 {vr(MA+1)}, 48, {vr(MA+1)}")
            k(f"v_add_u32 {vr(MA)}, {vr(MA)}, {vr(MA+1)}")
            if mat == 0:
                k(f"s_mul_i32 s57, {sr(S_CBM)}, 96")
                k("s_add_u32 s57, s57, 768")
                k(f"v_add_u32 {vr(MA+1)}, s57, {vr(V_LANE)}")
                k(f"v_subrev_u32 {vr(MA+2)}, 32, {vr(MA+1)}")
                k(f"v_cmp_gt_u32 vcc, 32, {vr(V_LANE)}")
                k(f"v_cndmask_b32 {vr(MA)}, {vr(MA+2)}, {vr(MA)}, vcc")
                k(f"v_add_u32 {vr(MA+1)}, 32, {vr(MA+1)}")
                k(f"v_lshlrev_b32 {vr(MA+1)}, 4, {vr(MA+1)}")
            k(f"v_lshlrev_b32 {vr(MA)}, 4, {vr(MA)}")
            k(f"s_mov_b32 s94, {MODT_OFF}")
            k(f"s_mov_b32 s95, {MODT_OFF + 1536*16}")

        def mt_loads(tag):
            ops = []
            for kp in range(2):
                for e_ in range(2 if mat == 0 else 1):
                    ops.append(lambda kp=kp, e_=e_: k.vmem(
                        f"buffer_load_dwordx4 {vr(MT+8*e_+4*kp,4)}, {vr(MA+e_)}, {sr(SWS,4)}, {sr(94+kp)} offen sc1",
                        tag))
            return ops

        def mt_check():
            regs = [MT + 8 * e_ + 4 * kp + 2 for e_ in range(2 if mat == 0 else 1) for kp in range(2)]
            k(f"v_cmp_ne_u64 vcc, {vr(regs[0],2)}, {vr(V_N,2)}")
            k("s_mov_b64 s[62:63], vcc")
            for r_ in regs[1:]:
                k(f"v_cmp_ne_u64 vcc, {vr(r_,2)}, {vr(V_N,2)}")
                k("s_or_b64 s[62:63], s[62:63], vcc")
        plan = {0: [5, 6], 1: [7], 2: [8], 3: [9], 4: [10], 5: [11]}
        if "plan2" in self.opts:
            plan = {0: [5, 6], 1: [7], 2: [8, 9], 3: [10], 4: [11]}
            plan = {0: [5, 6], 1: [7], 2: [8], 3: [9], 4: [10], 5: [11]}
        k.wait_vm(("A", 0))
        k("s_barrier")
        for f in read_ops(0):
            f()
        for st in range(12):
            s = st & 1
            nxt = read_ops(st + 1) if st + 1 < 12 else []
            per = (len(nxt) + 2) // 3 if nxt else 0
            dma = []
            for x in plan.get(st, []):
                assert x - 7 < st
                dma += [lambda x=x, i=i: issue_ops(x)[i]() for i in range(5)]
            dper = -(-len(dma) // 5)
            for n in range(6):
                kk, j = n // 3, n % 3
                if j == 0:
                    k.wait_lg(("r", st, kk))
                c = "0" if (st == 0 and kk == 0) else vr(ACC + 16 * j, 16)
                k(f"v_mfma_f32_32x32x16_bf16 {vr(ACC+16*j,16)}, {ar(FA(s,kk),4)}, {ar(FB(s,kk,j),4)}, {c}")
                if n != 3:
                    for _ in range(dper):
                        if dma:
                            dma.pop(0)()
                if n == 3:
                    if st + 1 < 12:
                        k.wait_vm(("A", st + 1))
                        k("s_barrier")
                    if "tsA" in self.opts and st in (0, 2, 4, 6, 8, 10):
                        self.ts(8 + st // 2)
                    if st == 4 and "noln" not in self.opts:
                        self.nonce_check()
                        self.xf_offset("s57")
                        self.publish("s57")
                if n >= 3:
                    for _ in range(per):
                        if nxt:
                            nxt.pop(0)()
            assert not dma and not nxt
            if st == 6:
                mt_addr()
            if st == 8:
                for f in mt_loads("mt"):
                    f()
            if st == 9:
                self.xf_poll_addr(9)
            if st == 10:
                self.poll_issue(12, 9, "0xffff", "poll")
        self.ts(2)
        S_BW = 59
        k(f"s_and_b32 s57, {sr(S_W)}, 1")
        k("s_lshl_b32 s57, s57, 1")
        k(f"s_lshr_b32 s58, {sr(S_W)}, 1")
        k(f"s_add_u32 {sr(S_BW)}, s57, s58")
        XA, XR, TA = 100, 101, 102
        k(f"s_mul_i32 s57, {sr(S_W)}, 6144")
        k(f"v_add_u32 {vr(XA)}, s57, {vr(V_L16)}")
        k(f"s_xor_b32 s57, {sr(S_W)}, 2")
        k("s_mul_i32 s57, s57, 6144")
        k(f"v_add_u32 {vr(XR)}, s57, {vr(V_L16)}")
        k(f"s_lshl_b32 s57, {sr(S_W)}, 10")
        k(f"s_add_u32 s57, s57, {LNBUF}")
        k(f"v_lshl_add_u32 {vr(TA)}, {vr(V_LANE)}, 2, s57")
        k(f"v_lshrrev_b32 {vr(TA+1)}, 5, {vr(V_LANE)}")
        k(f"v_lshl_add_u32 {vr(TA+1)}, {vr(TA+1)}, 4, s57")
        k(f"v_and_b32 {vr(TA+2)}, 31, {vr(V_LANE)}")
        k(f"v_lshlrev_b32 {vr(TA+3)}, 4, {vr(TA+2)}")
        k(f"v_lshl_add_u32 {vr(TA+2)}, {vr(TA+2)}, 2, s57")
        k(f"v_lshrrev_b32 {vr(TA+4)}, 5, {vr(V_LANE)}")
        k(f"s_mov_b32 s57, {WB_STRIDE}")
        k(f"v_mul_lo_u32 {vr(TA+4)}, {vr(TA+4)}, s57")
        k(f"v_add_u32 {vr(TA+3)}, {vr(TA+3)}, {vr(TA+4)}")
        k(f"s_add_u32 s57, {sr(S_CBM)}, {mat*8}")
        k("s_mul_i32 s58, s57, 51")
        k(f"s_lshl_b32 s56, {sr(S_IB)}, 2")
        k("s_add_u32 s56, s56, s58")
        k(f"s_add_u32 s56, s56, {sr(S_BW)}")
        k(f"s_mul_i32 {sr(S_OB)}, s56, 3072")
        if WTS_OFF:
            k(f"s_add_u32 {sr(S_OB)}, {sr(S_OB)}, {WTS_OFF}")
        k(f"s_lshr_b32 s56, {sr(S_IB)}, 2")
        k("s_add_u32 s56, s56, s58")
        k("s_add_u32 s56, s56, 48")
        k("s_mul_i32 s56, s56, 3072")
        k(f"s_and_b32 s58, {sr(S_IB)}, 1")
        k("s_lshl_b32 s58, s58, 9")
        k("s_add_u32 s56, s56, s58")
        k(f"s_lshr_b32 s58, {sr(S_IB)}, 1")
        k("s_and_b32 s58, s58, 1")
        k("s_lshl_b32 s58, s58, 2")
        k(f"s_add_u32 s58, s58, {sr(S_BW)}")
        k("s_lshl_b32 s58, s58, 1")
        k(f"s_add_u32 {sr(S_OA)}, s56, s58")
        if WTS_OFF:
            k(f"s_add_u32 {sr(S_OA)}, {sr(S_OA)}, {WTS_OFF}")
        k("s_lshl_b32 s57, s57, 2")
        k(f"s_add_u32 s57, s57, {sr(S_BW)}")
        k("s_lshl_b32 s57, s57, 7")
        k(f"s_lshl_b32 s58, {sr(S_IB)}, 3")
        k("s_add_u32 s57, s57, s58")
        k(f"s_add_u32 {sr(S_PEND)}, s57, {WF_OFF}")
        lok, lsp = k.newlabel("mtok"), k.newlabel("mtsp")
        k.wait_vm("mt")
        mt_check()
        k(f"s_cbranch_scc0 {lok}")
        k(f"s_mov_b32 {sr(S_SPIN)}, 0")
        k.label(lsp)
        sv = list(k.vm)
        for f in mt_loads("mt"):
            f()
        k("s_waitcnt vmcnt(0)")
        k.vm = sv
        mt_check()
        k(f"s_cbranch_scc0 {lok}")
        k(f"s_add_u32 {sr(S_SPIN)}, {sr(S_SPIN)}, 1")
        k(f"s_cmp_lt_u32 {sr(S_SPIN)}, {SPIN_MAX}")
        k(f"s_cbranch_scc1 {lsp}")
        k.label(lok)
        if "tsA2" in self.opts:
            self.ts(5)
        ne = 2 if mat == 0 else 1
        for e_ in range(ne):
            for b_ in range(2):
                k(f"v_add_f32 {vr(MT+8*e_+b_)}, {vr(MT+8*e_+b_)}, {vr(MT+8*e_+4+b_)}")
        k(f"v_cmp_le_u32 vcc, 16, {vr(V_LANE)}")
        k(f"v_cndmask_b32 {vr(MT+2)}, 0, 1.0, vcc")
        for b_ in range(2):
            k(f"v_add_f32 {vr(MT+b_)}, {vr(MT+b_)}, {vr(MT+2)}")
            if mat == 0:
                k(f"v_add_f32 {vr(MT+8+b_)}, 1.0, {vr(MT+8+b_)}")
        for e_ in range(ne):
            for b_ in range(2):
                k.ds(f"ds_write_b32 {vr(TA)}, {vr(MT+8*e_+b_)} offset:{b_*512+e_*256}", "tw")
        k("s_barrier")
        l1 = k.newlabel("akh1")
        l2 = k.newlabel("aend")
        k(f"s_lshr_b32 s57, {sr(S_W)}, 1")
        k("s_cmp_eq_u32 s57, 0")
        k(f"s_cbranch_scc0 {l1}")
        saved = (list(k.vm), list(k.lg))
        TK = 132
        GC = 164
        GH = 170
        RD = 64
        for kh in range(2):
            if kh == 1:
                k.label(l1)
                k.vm, k.lg = list(saved[0]), list(saved[1])
            send = 8 if kh == 0 else 0
            keep = 0 if kh == 0 else 8
            for j in range(3):
                for q in range(2):
                    k.ds(f"ds_write_b128 {vr(XA)}, {vr(ACC+16*j+send+4*q,4)} offset:{(j*2+q)*1024}", "xw")
            k.wait_lg("tw")
            for b_ in range(2):
                for wh in range(2):
                    for q in range(2):
                        k.ds(f"ds_read_b128 {vr(TK+16*b_+8*wh+4*q,4)}, {vr(TA+1)} "
                             f"offset:{b_*512+wh*64+q*32}", "tk")
            k.wait_lg("xw")
            k("s_barrier")
            if mat == 0:
                for j in range(3):
                    for b_ in range(2):
                        k.ds(f"ds_read_b32 {vr(GC+2*j+b_)}, {vr(TA+2)} offset:{b_*512+128+j*128}", "gc")
                k.wait_lg("tk")
            for j in range(3):
                for q in range(2):
                    k.ds(f"ds_read_b128 {vr(RD+8*j+4*q,4)}, {vr(XR)} offset:{(j*2+q)*1024}", ("e", j))
            if mat == 0:
                k.wait_lg("gc")
                k(f"s_mov_b32 s60, {f32hex(QSCALE)}")
                for j in range(3):
                    k(f"v_pk_mul_f32 {vr(GC+2*j,2)}, {vr(GC+2*j,2)}, s[60:61] op_sel_hi:[1,0]")
                k("s_mov_b32 s62, 0")
                k("s_mov_b32 s63, -1")
                for j in range(3):
                    k(f"v_cndmask_b32 {vr(GH+j)}, {vr(GC+2*j)}, {vr(GC+2*j+1)}, s[62:63]")
            else:
                k.wait_lg("tk")
            U = 176
            PK = 188
            for j in range(3):
                V = RD + 8 * j
                k.wait_lg(("e", j))
                for e in range(4):
                    k(f"v_pk_add_f32 {vr(V+2*e,2)}, {vr(ACC+16*j+keep+2*e,2)}, {vr(V+2*e,2)}")
                for b_ in range(2):
                    u = U + 4 * j + 2 * b_
                    t_ = TK + 16 * b_
                    k(f"v_pk_mul_f32 {vr(u,2)}, {vr(V,2)}, {vr(t_,2)}")
                    for e in range(1, 4):
                        k(f"v_pk_fma_f32 {vr(u,2)}, {vr(V+2*e,2)}, {vr(t_+2*e,2)}, {vr(u,2)}")
                for b_ in range(2):
                    g_ = TK + 16 * b_ + 8
                    X = 196 + 8 * b_
                    for e in range(4):
                        k(f"v_pk_mul_f32 {vr(X+2*e,2)}, {vr(V+2*e,2)}, {vr(g_+2*e,2)}")
                    if mat == 0:
                        sel = "op_sel_hi:[1,0]" if b_ == 0 else "op_sel:[0,1] op_sel_hi:[1,1]"
                        for e in range(4):
                            k(f"v_pk_mul_f32 {vr(X+2*e,2)}, {vr(X+2*e,2)}, {vr(GC+2*j,2)} {sel}")
                    pk = 212 + 8 * j + 4 * b_
                    for e in range(4):
                        k(f"v_cvt_pk_bf16_f32 {vr(pk+e)}, {vr(X+2*e)}, {vr(X+2*e+1)}")
                    if b_ == 0:
                        k.vmem(f"buffer_store_dwordx4 {vr(pk,4)}, {vr(V_L16)}, {sr(SWS,4)}, {sr(S_OB)} offen "
                               f"offset:{j*1024} sc1", "w")
                    else:
                        if j == 0:
                            k(f"s_add_u32 s57, {sr(S_OB)}, {WB_STRIDE}")
                        k.vmem(f"buffer_store_dwordx4 {vr(pk,4)}, {vr(V_L16)}, {sr(SWS,4)}, s57 offen "
                               f"offset:{j*1024} sc1", "w")
            for j in range(3):
                for b_ in range(2):
                    u = U + 4 * j + 2 * b_
                    k(f"v_add_f32 {vr(u)}, {vr(u)}, {vr(u+1)}")
            for j in range(3):
                k(f"v_permlane32_swap_b32 {vr(U+4*j)}, {vr(U+4*j+2)}")
            for j in range(3):
                k(f"v_add_f32 {vr(U+4*j)}, {vr(U+4*j)}, {vr(U+4*j+2)}")
            if mat == 0:
                for j in range(3):
                    k(f"v_mul_f32 {vr(U+4*j)}, {vr(U+4*j)}, {vr(GH+j)}")
            for j in range(3):
                k(f"v_cvt_pk_bf16_f32 {vr(U+4*j)}, {vr(U+4*j)}, {vr(U+4*j)}")
            for j in range(3):
                k.vmem(f"buffer_store_short {vr(U+4*j)}, {vr(TA+3)}, {sr(SWS,4)}, {sr(S_OA)} offen "
                       f"offset:{j*1024} sc1", "w")
            if kh == 0:
                k(f"s_branch {l2}")
        k.label(l2)
        self.ts(3)

    def phase_a_gemv(self):
        k = self.k
        S_G, S_CG, S_KP, S_O = 64, 65, 66, 67
        k(f"s_lshl_b32 {sr(S_G)}, {sr(S_XCD)}, 3")
        k(f"s_add_u32 {sr(S_G)}, {sr(S_G)}, {sr(S_IDX)}")
        k(f"s_sub_u32 {sr(S_G)}, {sr(S_G)}, 24")
        k(f"s_lshr_b32 {sr(S_CG)}, {sr(S_G)}, 1")
        k(f"s_and_b32 {sr(S_KP)}, {sr(S_G)}, 1")
        k(f"s_sub_u32 s57, {sr(S_G)}, 24")
        k(f"s_cmp_ge_u32 {sr(S_G)}, 48")
        k(f"s_cselect_b32 {sr(S_CG)}, s57, {sr(S_CG)}")
        k(f"s_cselect_b32 {sr(S_KP)}, 0, {sr(S_KP)}")
        k(f"s_cmp_ge_u32 {sr(S_G)}, 60")
        k(f"s_cselect_b32 {sr(S_CG)}, 0, {sr(S_CG)}")
        VT = 5
        k(f"s_lshl_b32 s57, {sr(S_W)}, 6")
        k(f"v_add_u32 {vr(VT)}, s57, {vr(V_LANE)}")
        VC = 6
        k(f"v_lshlrev_b32 v12, 1, {vr(VT)}")
        for b in range(2):
            for i in range(3):
                k.vmem(f"buffer_load_ushort {vr(VC+b*3+i)}, v12, {sr(SC,4)}, 0 offen offset:{b*1536+i*512}", "c")
        VW = 160
        k(f"v_lshrrev_b32 v13, 3, {vr(V_LANE)}")
        k(f"s_mul_i32 s57, {sr(S_W)}, 96")
        k("v_add_u32 v13, s57, v13")
        k("v_mul_u32_u24 v14, 9216, v13")
        k(f"v_and_b32 v15, 7, {vr(V_LANE)}")
        k("v_lshl_add_u32 v14, v15, 4, v14")

        def w_load_ops(second=False):
            base = VW + 48 if second else VW

            def op(i):
                def f():
                    if i == 0:
                        if second:
                            k(f"s_mov_b32 {sr(S_O)}, {384*9216}")
                        else:
                            k(f"s_mul_i32 {sr(S_O)}, {sr(S_KP)}, {384*9216}")
                        k(f"s_lshl_b32 s57, {sr(S_CG)}, 7")
                        k(f"s_add_u32 {sr(S_O)}, {sr(S_O)}, s57")
                    ins = f"buffer_load_dwordx4 {vr(base+4*i,4)}, v14, {sr(SWM,4)}, {sr(S_O)} offen nt"
                    if second:
                        k(ins)
                    else:
                        k.vmem(ins, ("w", i))
                    if i < 11:
                        k(f"s_add_u32 {sr(S_O)}, {sr(S_O)}, {8*9216}")
                return f
            return [op(i) for i in range(12)]

        def w2_loads():
            k(f"s_sub_u32 s58, {sr(S_G)}, 48")
            k("s_cmp_lt_u32 s58, 12")
            k("s_cselect_b64 exec, -1, 0")
            for f in w_load_ops(True):
                f()
            k("s_mov_b64 exec, -1")
        wops = w_load_ops()
        for f in wops[:8]:
            f()
        if "tsA" in self.opts:
            self.ts(5)
        self.roles()
        if "tsA" in self.opts:
            self.ts(8)
        k.wait_vm("c")
        if "tsA" in self.opts:
            self.ts(9)
        k(f"s_mov_b32 s57, {f32hex(-1.4426950408889634)}")
        for n in range(6):
            k(f"v_lshlrev_b32 {vr(VC+n)}, 16, {vr(VC+n)}")
        for n in range(6):
            k(f"v_mul_f32 {vr(16+n)}, s57, {vr(VC+n)}")
        for n in range(6):
            k(f"v_exp_f32 {vr(16+n)}, {vr(16+n)}")
        for n in range(6):
            k(f"v_add_f32 {vr(16+n)}, 1.0, {vr(16+n)}")
        for n in range(6):
            k(f"v_rcp_f32 {vr(16+n)}, {vr(16+n)}")
        for i in range(3):
            k(f"v_mul_f32 {vr(22+2*i)}, {vr(VC+i)}, {vr(16+i)}")
            k(f"v_mul_f32 {vr(23+2*i)}, {vr(VC+3+i)}, {vr(16+3+i)}")
        k(f"v_lshlrev_b32 v12, 3, {vr(VT)}")
        for i in range(3):
            k.ds(f"ds_write_b64 v12, {vr(22+2*i,2)} offset:{i*2048}")
        self.ln8(wops[8:] + [self.code_prefetch], every=10)
        self.ts(1)
        self.nonce_issue()
        w2_loads()

        def gemv_pass(first):
            VWp = VW if first else VW + 48
            wt = "w" if first else "w2"
            RED = 8192 if first else 12288
            AC = 40
            SV = 56
            TM = 32
            k(f"s_mul_i32 s57, {sr(S_KP)}, {384*8}")
            k("v_lshl_add_u32 v12, v13, 3, s57")
            for i in range(2):
                k.ds(f"ds_read_b64 {vr(SV+2*i,2)}, v12 offset:{i*64}", ("s", i))
            for i in range(12):
                k.wait_vm((wt, i))
                if "tsA" in self.opts and first and i in (0, 11):
                    self.ts(10 if i == 0 else 11)
                for d in range(4):
                    k(f"v_lshlrev_b32 {vr(TM+2*d)}, 16, {vr(VWp+4*i+d)}")
                    k(f"v_and_b32 {vr(TM+2*d+1)}, {sr(S_MASK)}, {vr(VWp+4*i+d)}")
                k.wait_lg(("s", i))
                s = vr(SV + 2 * (i % 2), 2)
                for c in range(8):
                    src = vr(TM + (c & ~1), 2)
                    sel = "op_sel_hi:[0,1,1]" if c % 2 == 0 else "op_sel:[1,0,0] op_sel_hi:[1,1,1]"
                    if i == 0:
                        sel = "op_sel_hi:[0,1]" if c % 2 == 0 else "op_sel:[1,0] op_sel_hi:[1,1]"
                        k(f"v_pk_mul_f32 {vr(AC+2*c,2)}, {src}, {s} {sel}")
                    else:
                        k(f"v_pk_fma_f32 {vr(AC+2*c,2)}, {src}, {s}, {vr(AC+2*c,2)} {sel}")
                if i + 2 < 12:
                    k.ds(f"ds_read_b64 {vr(SV+2*(i%2),2)}, v12 offset:{(i+2)*64}", ("s", i + 2))
            if first:
                k.wait_vm("nonce")
                self.nonce_check()
                self.xf_offset("s57")
                self.publish("s57")
            for i in range(8):
                k(f"v_permlane32_swap_b32 {vr(AC+i)}, {vr(AC+i+8)}")
            for i in range(8):
                k(f"v_add_f32 {vr(AC+i)}, {vr(AC+i)}, {vr(AC+i+8)}")
            for i in range(4):
                k(f"v_permlane16_swap_b32 {vr(AC+i)}, {vr(AC+i+4)}")
            for i in range(4):
                k(f"v_add_f32 {vr(AC+i)}, {vr(AC+i)}, {vr(AC+i+4)}")
            for i in range(4):
                k(f"v_add_f32_dpp {vr(AC+i)}, {vr(AC+i)}, {vr(AC+i)} row_ror:8 row_mask:0xf bank_mask:0xf")
            k(f"s_lshl_b32 s57, {sr(S_W)}, 10")
            k(f"v_add_u32 v12, s57, {vr(V_L16)}")
            k.ds(f"ds_write_b128 v12, {vr(AC,4)} offset:{RED}")
            k.wait_lg_all()
            k("s_barrier")
            skip = k.newlabel("red")
            k(f"s_cmp_eq_u32 {sr(S_W)}, 0")
            k(f"s_cbranch_scc0 {skip}")
            sv = list(k.vm)
            for w in range(1, 4):
                k.ds(f"ds_read_b128 {vr(44+4*(w-1),4)}, {vr(V_L16)} offset:{RED+w*1024}")
            k.wait_lg_all()
            for e in range(4):
                k(f"v_add_f32 {vr(44+e)}, {vr(44+e)}, {vr(48+e)}")
                k(f"v_add_f32 {vr(AC+e)}, {vr(AC+e)}, {vr(52+e)}")
            for e in range(4):
                k(f"v_add_f32 {vr(AC+e)}, {vr(AC+e)}, {vr(44+e)}")
            k(f"v_and_b32 v32, 8, {vr(V_LANE)}")
            k("v_cmp_eq_u32 vcc, 0, v32")
            k(f"v_cndmask_b32 v36, {vr(AC+2)}, {vr(AC)}, vcc")
            k(f"v_cndmask_b32 v37, {vr(AC+3)}, {vr(AC+1)}, vcc")
            k(f"v_lshrrev_b32 v35, 4, {vr(V_LANE)}")
            k("v_lshlrev_b32 v35, 1, v35")
            k("v_lshrrev_b32 v32, 3, v32")
            k("v_add_u32 v35, v35, v32")
            k("v_lshl_add_u32 v35, v15, 3, v35")
            if first:
                gate, nost = k.newlabel("gate"), k.newlabel("nost")
                k(f"s_cmp_ge_u32 {sr(S_G)}, 60")
                k(f"s_cbranch_scc1 {nost}")
                k(f"s_cmp_ge_u32 {sr(S_G)}, 48")
                k(f"s_cbranch_scc1 {gate}")
                k(f"v_mov_b32 v38, {vr(V_N)}")
                k(f"v_mov_b32 v39, {vr(V_N+1)}")
                k("v_lshlrev_b32 v35, 4, v35")
                k(f"s_mul_i32 s57, {sr(S_KP)}, {1536*16}")
                k(f"s_lshl_b32 s58, {sr(S_CG)}, 10")
                k("s_add_u32 s57, s57, s58")
                k(f"s_add_u32 s57, s57, {MODT_OFF}")
                k(f"buffer_store_dwordx4 v[36:39], v35, {sr(SWS,4)}, s57 offen sc1")
                k(f"s_branch {nost}")
                k.label(gate)
            k("v_lshlrev_b32 v35, 2, v35")
            k(f"s_lshl_b32 s58, {sr(S_CG)}, 8")
            k(f"s_add_u32 s57, s58, {MOD_OFF + (0 if first else 2*2304*4)}")
            k(f"buffer_store_dword v36, v35, {sr(SWS,4)}, s57 offen sc1")
            k(f"s_add_u32 s57, s57, {2304*4}")
            k(f"buffer_store_dword v37, v35, {sr(SWS,4)}, s57 offen sc1")
            if first:
                k.label(nost)
            k.label(skip)
            k.vm = sv
        gemv_pass(True)
        self.ts(2)
        done = k.newlabel("gvdone")
        k(f"s_sub_u32 s58, {sr(S_G)}, 48")
        k("s_cmp_lt_u32 s58, 12")
        k(f"s_cbranch_scc0 {done}")
        k(f"s_mov_b32 {sr(S_KP)}, 1")
        gemv_pass(False)
        k.wait_vm_all()
        k(f"s_cmp_eq_u32 {sr(S_W)}, 0")
        k(f"s_cbranch_scc0 {done}")
        k(f"s_lshl_b32 s57, {sr(S_G)}, 3")
        k(f"s_add_u32 s57, s57, {MF_OFF}")
        self.publish("s57")
        k.label(done)
        k.vm = []
        k(f"s_mov_b32 {sr(S_PEND)}, 0")
        self.xf_poll_addr(9)
        self.poll_issue(12, 9, "0xffff", "poll")
        k.wait_vm_all()
        self.ts(3)

    HB = 64

    def phase_b_pre(self):
        k = self.k
        HB = self.HB
        S_HB, S_WB, S_M0, S_O = 64, 65, 66, 67
        ok = k.newlabel("xfok")
        k("s_waitcnt vmcnt(9)")
        self.poll_eval(12, "0xffff")
        k(f"s_cbranch_vccz {ok}")
        k("s_waitcnt vmcnt(0)")
        np_ = k.newlabel("np")
        k(f"s_cmp_eq_u32 {sr(S_PEND)}, 0")
        k(f"s_cbranch_scc1 {np_}")
        self.publish(sr(S_PEND))
        k(f"s_mov_b32 {sr(S_PEND)}, 0")
        k.label(np_)
        self.spin(12, 9, "0xffff")
        k.label(ok)
        k.vm = ["wst"] * 9
        self.ts(4)
        k(f"s_lshl_b32 s57, {sr(S_R)}, 2")
        k(f"s_add_u32 s57, s57, {sr(S_W)}")
        k(f"s_mul_i32 {sr(S_HB)}, s57, 49152")
        k(f"s_add_u32 {sr(S_HB)}, {sr(S_HB)}, {XN_OFF}")

        def xn_load(f):
            if f % 4 == 0 and f:
                k(f"s_add_u32 {sr(S_HB)}, {sr(S_HB)}, 4096")
            k.vmem(f"buffer_load_dwordx4 {vr(HB+4*f,4)}, {vr(V_L16)}, {sr(SWS,4)}, {sr(S_HB)} offen "
                   f"offset:{(f%4)*1024} sc1", ("h", f // 4))
        N1, N2 = self.NX1, self.NX2
        for f in range(N1):
            xn_load(f)
        k(f"s_lshr_b32 s57, {sr(S_R)}, 3")
        k("s_lshl_b32 s57, s57, 4")
        k(f"s_add_u32 s57, s57, {sr(S_CB)}")
        k(f"s_mul_i32 {sr(S_WB)}, s57, {51*3072}")
        k(f"s_mul_i32 {sr(S_M0)}, {sr(S_W)}, 3072")
        k(f"s_add_u32 {sr(S_WB)}, {sr(S_WB)}, {sr(S_M0)}")
        if WTS_OFF:
            k(f"s_add_u32 {sr(S_WB)}, {sr(S_WB)}, {WTS_OFF}")
        k(f"s_lshl_b32 s57, {sr(S_CB)}, 9")
        k(f"s_add_u32 s57, s57, {WF_OFF}")
        k(f"v_lshlrev_b32 v9, 3, {vr(V_LANE)}")
        k("v_add_u32 v9, s57, v9")
        k.wait_vm("wst")
        np2 = k.newlabel("np")
        k(f"s_cmp_eq_u32 {sr(S_PEND)}, 0")
        k(f"s_cbranch_scc1 {np2}")
        k("s_mov_b64 exec, 1")
        k(f"buffer_store_dwordx2 {vr(V_N,2)}, off, {sr(SWS,4)}, {sr(S_PEND)} sc1")
        k("s_mov_b64 exec, -1")
        k.label(np2)
        self.ts(5)
        for f in range(N1, N2):
            xn_load(f)
        wmask = "s_mov_b32 exec_lo, 0x0fff0fff\ns_mov_b32 exec_hi, 0x0fff0fff"
        k(wmask)
        k.vmem(f"buffer_load_dwordx2 v[12:13], v9, {sr(SWS,4)}, 0 offen sc1", "wpoll")
        k("s_mov_b64 exec, -1")
        for f in range(N2, 48):
            xn_load(f)
        k.wait_vm("wpoll")
        lw = k.newlabel("wok")
        k(wmask)
        k(f"v_cmp_ne_u64 vcc, v[12:13], {vr(V_N,2)}")
        k("s_mov_b64 exec, -1")
        k(f"s_cbranch_vccz {lw}")
        sv = list(k.vm)
        self.spin_at(12, 9, wmask)
        k.label(lw)
        k.vm = sv
        self.ts(6)
        for c in range(self.NWPRE):
            for f in self.w_issue_ops(c):
                f()
        for i in range(4):
            k(f"v_mov_b32 {vr(8+i)}, 0x3f803f80")
        self.ts(7)

    NX1, NX2 = 20, 36
    NWPRE = 6

    def w_issue_ops(self, c):
        k = self.k
        S_WB, S_M0, S_O = 65, 66, 67
        ops = []

        def f(i):
            def g():
                if i == 0:
                    k(f"s_add_u32 {sr(S_O)}, {sr(S_WB)}, {c*12288}")
                    k(f"s_add_u32 m0, {sr(S_M0)}, {c*12288}")
                k.vmem(f"buffer_load_dwordx4 {vr(V_L16)}, {sr(SWS,4)}, {sr(S_O)} offen offset:{i*1024} sc1 lds",
                       ("W", c))
            return g
        return [f(i) for i in range(3)]

    def phase_b(self):
        k = self.k
        HB = self.HB
        RW = 4
        k(f"v_mov_b32 {vr(RW)}, {vr(V_L16)}")
        k(f"v_add_u32 {vr(RW+1)}, 0x10000, {vr(V_L16)}")
        k(f"v_add_u32 {vr(RW+2)}, 0x20000, {vr(V_L16)}")
        ACC = 16
        NR, DIST = 8, 5
        lv = k.newlabel("bV")
        le = k.newlabel("bE")
        k(f"s_cmp_lt_u32 {sr(S_CB)}, 8")
        k(f"s_cbranch_scc0 {lv}")
        saved = (list(k.vm), list(k.lg))
        for part in range(2):
            if part == 1:
                k.label(lv)
                k.vm, k.lg = list(saved[0]), list(saved[1])

            def read(f):
                k.ds(f"ds_read_b128 {ar(4*(f%NR),4)}, {vr(RW+f//64)} offset:{(f%64)*1024}", ("f", f))
            k.wait_vm(("W", 0))
            k("s_barrier")
            for f in range(DIST):
                read(f)
            dma = []
            for f in range(153):
                c, m = f // 12, f % 12
                if m == 0 and c + self.NWPRE < 13:
                    dma = self.w_issue_ops(c + self.NWPRE)
                nf = f + DIST
                if nf < 153:
                    if nf % 12 == 0:
                        k.wait_vm(("W", nf // 12))
                        k("s_barrier")
                    read(nf)
                k.wait_lg(("f", f))
                ks, j = f // 3, f % 3
                cc = "0" if ks == 0 else vr(ACC + 16 * j, 16)
                hx = vr(HB + 4 * ks, 4) if ks < 48 else vr(8, 4)
                if part == 0:
                    k(f"v_mfma_f32_32x32x16_bf16 {vr(ACC+16*j,16)}, {ar(4*(f%NR),4)}, {hx}, {cc}")
                else:
                    k(f"v_mfma_f32_32x32x16_bf16 {vr(ACC+16*j,16)}, {hx}, {ar(4*(f%NR),4)}, {cc}")
                if m in (1, 5, 9) and dma:
                    dma.pop(0)()
            k("s_barrier")
            self.ts(8)
            if part == 0:
                k(f"s_lshl_b32 s57, {sr(S_R)}, 2")
                k(f"s_add_u32 s57, s57, {sr(S_W)}")
                k("s_mul_i32 s56, s57, 48")
                k(f"s_mul_i32 s58, {sr(S_CB)}, 6")
                k("s_add_u32 s56, s56, s58")
                k("s_lshl_b32 s56, s56, 10")
                k(f"s_add_u32 s56, s56, {T_OFF}")
                k("s_lshl_b32 s57, s57, 3")
                k(f"s_add_u32 s57, s57, {sr(S_CB)}")
                k("s_lshl_b32 s57, s57, 3")
                k(f"s_add_u32 {sr(S_PEND)}, s57, {TF_OFF}")
            else:
                k(f"s_lshr_b32 s58, {sr(S_R)}, 3")
                k("s_mul_i32 s56, s58, 24")
                k(f"s_sub_u32 s60, {sr(S_CB)}, 8")
                k("s_mul_i32 s61, s60, 3")
                k("s_add_u32 s56, s56, s61")
                k("s_lshl_b32 s56, s56, 6")
                k(f"s_and_b32 s61, {sr(S_R)}, 7")
                k("s_lshl_b32 s62, s61, 3")
                k("s_add_u32 s56, s56, s62")
                k(f"s_lshl_b32 s62, {sr(S_W)}, 1")
                k("s_add_u32 s56, s56, s62")
                k("s_lshl_b32 s56, s56, 10")
                k(f"s_add_u32 s56, s56, {VT_OFF}")
                k("s_lshl_b32 s57, s58, 3")
                k("s_add_u32 s57, s57, s60")
                k("s_lshl_b32 s57, s57, 3")
                k("s_add_u32 s57, s57, s61")
                k("s_lshl_b32 s57, s57, 2")
                k(f"s_add_u32 s57, s57, {sr(S_W)}")
                k("s_lshl_b32 s57, s57, 3")
                k(f"s_add_u32 {sr(S_PEND)}, s57, {VF_OFF}")
            for j in range(3):
                for s in range(2):
                    d = ACC + 16 * j + 8 * s
                    for e in range(4):
                        k(f"v_cvt_pk_bf16_f32 {vr(d+e)}, {vr(ACC+16*j+8*s+2*e)}, {vr(ACC+16*j+8*s+2*e+1)}")
                    if part == 0:
                        n = 2 * j + s
                        if n == 4:
                            k("s_add_u32 s56, s56, 4096")
                        k.vmem(f"buffer_store_dwordx4 {vr(d,4)}, {vr(V_L16)}, {sr(SWS,4)}, s56 offen "
                               f"offset:{(n%4)*1024} sc1", "bst")
                    else:
                        k.vmem(f"buffer_store_dwordx4 {vr(d,4)}, {vr(V_L16)}, {sr(SWS,4)}, s56 offen "
                               f"offset:{s*1024} sc1", "bst")
                if part == 1 and j < 2:
                    k("s_add_u32 s56, s56, 65536")
            if part == 0:
                k(f"s_branch {le}")
        k.label(le)
        self.ts(9)

    S_B, S_QB, S_DB, S_VO, S_PB, S_XO = 64, 65, 66, 67, 68, 69
    V_GO = 10
    XM_LDS = 98304
    ML_LDS = 98304 + 1024
    A_RING, A_X, A_G = 192, 220, 232

    def spin_at(self, vdst, voff, mask, off=0):
        k = self.k
        loop = k.newlabel("spin")
        done = k.newlabel("spun")
        o = f" offset:{off}" if off else ""
        k(f"s_mov_b32 {sr(S_SPIN)}, 0")
        k(mask)
        k.label(loop)
        k(f"buffer_load_dwordx2 {vr(vdst,2)}, {vr(voff)}, {sr(SWS,4)}, 0 offen{o} sc1")
        k("s_waitcnt vmcnt(0)")
        k(f"v_cmp_ne_u64 vcc, {vr(vdst,2)}, {vr(V_N,2)}")
        k(f"s_cbranch_vccz {done}")
        k(f"s_add_u32 {sr(S_SPIN)}, {sr(S_SPIN)}, 1")
        k(f"s_cmp_lt_u32 {sr(S_SPIN)}, {SPIN_MAX}")
        k(f"s_cbranch_scc1 {loop}")
        k.label(done)
        k("s_mov_b64 exec, -1")
        k.vm = []

    def phase_c(self):
        k = self.k
        HB = self.HB
        S_B, S_QB, S_DB, S_VO, S_PB, S_XO = self.S_B, self.S_QB, self.S_DB, self.S_VO, self.S_PB, self.S_XO
        S_TB, S_M0, S_O, S_R0 = 60, 61, 62, 63
        k(f"s_lshr_b32 {sr(S_B)}, {sr(S_XCD)}, 2")
        k(f"s_and_b32 s56, {sr(S_XCD)}, 1")
        k("s_lshl_b32 s56, s56, 3")
        k(f"s_and_b32 {sr(S_QB)}, {sr(S_IDX)}, 7")
        k(f"s_add_u32 {sr(S_QB)}, {sr(S_QB)}, s56")
        k(f"s_lshr_b32 s56, {sr(S_XCD)}, 1")
        k("s_and_b32 s56, s56, 1")
        k("s_lshl_b32 s56, s56, 2")
        k(f"s_lshr_b32 {sr(S_DB)}, {sr(S_IDX)}, 3")
        k(f"s_add_u32 {sr(S_DB)}, {sr(S_DB)}, s56")
        k(f"s_lshl_b32 {sr(S_R0)}, {sr(S_B)}, 5")
        k(f"s_lshl_b32 s56, {sr(S_CB)}, 1")
        k(f"s_add_u32 {sr(S_R0)}, {sr(S_R0)}, s56")
        k(f"s_mul_i32 {sr(S_TB)}, {sr(S_R0)}, 49152")
        k(f"s_lshl_b32 {sr(S_M0)}, {sr(S_W)}, 12")
        k(f"s_add_u32 {sr(S_TB)}, {sr(S_TB)}, {sr(S_M0)}")
        k(f"s_add_u32 {sr(S_TB)}, {sr(S_TB)}, {T_OFF}")
        k(f"s_lshl_b32 s56, {sr(S_R0)}, 6")
        k(f"s_add_u32 s56, s56, {TF_OFF}")
        k(f"s_lshl_b32 s57, {sr(S_B)}, 3")
        k(f"s_add_u32 s57, s57, {sr(S_DB)}")
        k("s_lshl_b32 s57, s57, 8")
        k(f"s_lshl_b32 s58, {sr(S_W)}, 6")
        k("s_add_u32 s57, s57, s58")
        k(f"s_add_u32 s57, s57, {VF_OFF - 128}")
        k(f"v_mov_b32 v9, {MF_OFF + 48*8 - 24*8}")
        k("v_mov_b32 v11, s57")
        k(f"v_cmp_gt_u32 vcc, 24, {vr(V_LANE)}")
        k("v_cndmask_b32 v9, v9, v11, vcc")
        k("v_mov_b32 v11, s56")
        k(f"v_cmp_gt_u32 vcc, 16, {vr(V_LANE)}")
        k("v_cndmask_b32 v9, v9, v11, vcc")
        k(f"v_lshl_add_u32 v9, {vr(V_LANE)}, 3, v9")
        k(f"s_lshl_b32 s56, {sr(S_R0)}, 6")
        k(f"s_and_b32 s57, {sr(S_R)}, 7")
        k("s_lshl_b32 s58, s57, 3")
        k("s_add_u32 s56, s56, s58")
        k(f"s_lshl_b32 s58, {sr(S_W)}, 1")
        k("s_add_u32 s56, s56, s58")
        k("s_lshl_b32 s56, s56, 10")
        k(f"s_add_u32 {sr(S_PB)}, s56, {P_OFF}")
        k(f"s_lshl_b32 s56, {sr(S_R0)}, 3")
        k("s_add_u32 s56, s56, s57")
        k("s_lshl_b32 s56, s56, 2")
        k(f"s_add_u32 s56, s56, {sr(S_W)}")
        k("s_lshl_b32 s94, s56, 8")
        k(f"s_add_u32 s94, s94, {ST_OFF}")
        k("s_lshl_b32 s95, s56, 3")
        k(f"s_add_u32 s95, s95, {PF_OFF}")
        k(f"s_mul_i32 s56, {sr(S_B)}, 24")
        k(f"s_mul_i32 s57, {sr(S_DB)}, 3")
        k("s_add_u32 s56, s56, s57")
        k("s_lshl_b32 s56, s56, 6")
        k(f"s_lshl_b32 s57, {sr(S_W)}, 4")
        k("s_add_u32 s56, s56, s57")
        k("s_lshl_b32 s56, s56, 10")
        k(f"s_add_u32 {sr(S_VO)}, s56, {VT_OFF}")
        k(f"s_lshl_b32 s56, {sr(S_B)}, 4")
        k(f"s_add_u32 s56, s56, {sr(S_QB)}")
        k(f"s_mul_i32 s56, s56, {64*1536}")
        k(f"s_mul_i32 s57, {sr(S_DB)}, 192")
        k(f"s_add_u32 {sr(S_XO)}, s56, s57")
        GO = self.V_GO
        k(f"v_lshrrev_b32 v14, 3, {vr(V_LANE)}")
        k(f"s_lshl_b32 s56, {sr(S_W)}, 3")
        k("v_add_u32 v14, s56, v14")
        k(f"v_mul_u32_u24 {vr(GO)}, 1536, v14")
        k(f"v_and_b32 v15, 7, {vr(V_LANE)}")
        k(f"v_lshl_add_u32 {vr(GO)}, v15, 3, {vr(GO)}")
        k("v_lshlrev_b32 v15, 4, v15")
        RW = 4
        k(f"v_mov_b32 {vr(RW)}, {vr(V_L16)}")
        k(f"v_add_u32 {vr(RW+1)}, 0x10000, {vr(V_L16)}")
        k(f"v_and_b32 v8, 31, {vr(V_LANE)}")
        k("v_lshlrev_b32 v7, 4, v8")
        k(f"v_add_u32 v7, {self.XM_LDS}, v7")
        k(f"s_lshl_b32 s56, {sr(S_W)}, 2")
        k("v_add_u32 v6, s56, v7")
        k("v_lshlrev_b32 v8, 3, v8")
        k.wait_vm_all()
        self.publish(sr(S_PEND))
        self.ts(10)
        self.spin_at(12, 9, "s_bfm_b64 exec, 36, 0")
        self.ts(11)
        for c in range(6):
            k(f"s_add_u32 {sr(S_O)}, {sr(S_TB)}, {c*16384}")
            k(f"s_add_u32 m0, {sr(S_M0)}, {c*16384}")
            for i in range(4):
                k.vmem(f"buffer_load_dwordx4 {vr(V_L16)}, {sr(SWS,4)}, {sr(S_O)} offen offset:{i*1024} sc1 lds",
                       ("T", c))
        pre = []

        def xl(sub, j):
            def f():
                if j == 0:
                    k(f"s_add_u32 s56, {sr(S_XO)}, {sub*32*1536}")
                k.vmem(f"buffer_load_dwordx2 {ar(self.A_X+2*(3*sub+j),2)}, {vr(GO)}, {sr(SX,4)}, s56 offen "
                       f"offset:{j*64}", "x")
            return f

        def gl(kp, j):
            def f():
                if j == 0:
                    if kp == 0:
                        k(f"s_mul_i32 s57, {sr(S_B)}, {2304*4}")
                        k(f"s_mul_i32 s58, {sr(S_DB)}, 384")
                        k("s_add_u32 s57, s57, s58")
                        k(f"s_add_u32 s57, s57, {MOD_OFF + 1536*4}")
                    else:
                        k(f"s_add_u32 s57, s57, {2*2304*4}")
                k.vmem(f"buffer_load_dwordx4 {ar(self.A_G+12*kp+4*j,4)}, v15, {sr(SWS,4)}, s57 offen "
                       f"offset:{j*128} sc1", "g")
            return f

        def vl(j, s):
            def f():
                if s % 4 == 0:
                    k(f"s_add_u32 s59, {sr(S_VO)}, {j*65536 + s*1024}")
                k.vmem(f"buffer_load_dwordx4 {ar((j*16+s)*4,4)}, {vr(V_L16)}, {sr(SWS,4)}, s59 offen "
                       f"offset:{(s%4)*1024} sc1", "V")
            return f
        for kp in range(2):
            pre += [gl(kp, j) for j in range(3)]
        for j in range(3):
            pre += [vl(j, s) for s in range(16)]
        for sub in range(2):
            pre += [xl(sub, j) for j in range(3)]

        ACC = 16
        NR, DIST = 7, 5

        def read(f):
            k.ds(f"ds_read_b128 {ar(self.A_RING+4*(f%NR),4)}, {vr(RW+f//64)} offset:{(f%64)*1024}", ("f", f))

        def softmax_ops(sub):
            A = ACC + 16 * sub
            M, T2 = 48, 49
            ST_ = 50 + 2 * sub
            X = 56
            ops = []

            def e(line):
                ops.append(lambda: k(line))
            e(f"v_max3_f32 {vr(M)}, {vr(A)}, {vr(A+1)}, {vr(A+2)}")
            e(f"v_max3_f32 {vr(T2)}, {vr(A+3)}, {vr(A+4)}, {vr(A+5)}")
            for x in range(6, 14, 4):
                e(f"v_max3_f32 {vr(M)}, {vr(M)}, {vr(A+x)}, {vr(A+x+1)}")
                e(f"v_max3_f32 {vr(T2)}, {vr(T2)}, {vr(A+x+2)}, {vr(A+x+3)}")
            e(f"v_max3_f32 {vr(M)}, {vr(M)}, {vr(A+14)}, {vr(A+15)}")
            e(f"v_max_f32 {vr(M)}, {vr(M)}, {vr(T2)}")
            e(f"v_mov_b32 {vr(T2)}, {vr(M)}")
            e(f"v_permlane32_swap_b32 {vr(T2)}, {vr(M)}")
            e(f"v_max_f32 {vr(M)}, {vr(M)}, {vr(T2)}")
            ops.append(lambda: k.ds(f"ds_write_b32 v6, {vr(M)} offset:{sub*512}", ("mw", sub)))

            def bar():
                k.wait_lg(("mw", sub))
                k("s_barrier")
                k.ds(f"ds_read_b128 {vr(X,4)}, v7 offset:{sub*512}", ("mr", sub))
            ops.append(bar)
            nbar = len(ops)
            ops.append(lambda: k.wait_lg(("mr", sub)))
            e(f"v_max3_f32 {vr(ST_)}, {vr(X)}, {vr(X+1)}, {vr(X+2)}")
            e(f"v_max_f32 {vr(ST_)}, {vr(ST_)}, {vr(X+3)}")
            for x in range(16):
                e(f"v_sub_f32 {vr(A+x)}, {vr(A+x)}, {vr(ST_)}")
            for x in range(16):
                e(f"v_exp_f32 {vr(A+x)}, {vr(A+x)}")
            e(f"v_add_f32 {vr(M)}, {vr(A)}, {vr(A+1)}")
            e(f"v_add_f32 {vr(T2)}, {vr(A+2)}, {vr(A+3)}")
            for x in range(4, 16, 2):
                e(f"v_add_f32 {vr(M)}, {vr(M)}, {vr(A+x)}")
                e(f"v_add_f32 {vr(T2)}, {vr(T2)}, {vr(A+x+1)}")
            for s in range(2):
                d = A + 8 * s
                for x in range(4):
                    e(f"v_cvt_pk_bf16_f32 {vr(d+x)}, {vr(d+2*x)}, {vr(d+2*x+1)}")

                def st(s=s, d=d):
                    if s == 0:
                        k(f"s_add_u32 s58, {sr(S_PB)}, {sub*65536}")
                    k.vmem(f"buffer_store_dwordx4 {vr(d,4)}, {vr(V_L16)}, {sr(SWS,4)}, s58 offen "
                           f"offset:{s*1024} sc1", ("P", sub))
                ops.append(st)
            e(f"v_add_f32 {vr(M)}, {vr(M)}, {vr(T2)}")
            e(f"v_mov_b32 {vr(T2)}, {vr(M)}")
            e(f"v_permlane32_swap_b32 {vr(T2)}, {vr(M)}")
            e(f"v_add_f32 {vr(ST_+1)}, {vr(M)}, {vr(T2)}")

            def stst():
                k(f"s_add_u32 s58, s94, {sub*8192}")
                k("s_mov_b32 exec_hi, 0")
                k.vmem(f"buffer_store_dwordx2 {vr(ST_,2)}, v8, {sr(SWS,4)}, s58 offen sc1", ("P", sub))
                k("s_mov_b32 exec_hi, -1")
            ops.append(stst)
            return ops

        k.wait_vm(("T", 0))
        k("s_barrier")
        for f in range(DIST):
            read(f)
        sm0 = []
        for f in range(96):
            sub, ks = f // 48, f % 48
            nf = f + DIST
            if nf < 96:
                if nf % 16 == 0:
                    k.wait_vm(("T", nf // 16))
                    k("s_barrier")
                read(nf)
            k.wait_lg(("f", f))
            cc = "0" if ks == 0 else vr(ACC + 16 * sub, 16)
            k(f"v_mfma_f32_32x32x16_bf16 {vr(ACC+16*sub,16)}, {vr(HB+4*ks,4)}, "
              f"{ar(self.A_RING+4*(f%NR),4)}, {cc}")
            if f == 48 + 3:
                sm0 = softmax_ops(0)
            if sub == 0:
                if f % 2 == 1 and pre:
                    pre.pop(0)()
            else:
                n = 3
                while sm0 and n:
                    sm0.pop(0)()
                    n -= 1
                if f % 2 == 1 and pre:
                    pre.pop(0)()
        while sm0:
            sm0.pop(0)()
        while pre:
            pre.pop(0)()
        self.ts(13)
        for f in softmax_ops(1):
            f()
        k.wait_vm(("P", 0))
        self.publish("s95")

    def phase_d(self):
        k = self.k
        S_B, S_QB, S_DB, S_VO, S_PB, S_XO = self.S_B, self.S_QB, self.S_DB, self.S_VO, self.S_PB, self.S_XO
        GO = self.V_GO
        S_O, S_PS, S_SS = 62, 60, 61
        k(f"s_lshl_b32 s56, {sr(S_B)}, 5")
        k(f"s_lshl_b32 s57, {sr(S_QB)}, 1")
        k("s_add_u32 s56, s56, s57")
        k("s_lshl_b32 s57, s56, 6")
        k(f"s_lshl_b32 s58, {sr(S_W)}, 4")
        k("s_add_u32 s57, s57, s58")
        k("s_lshl_b32 s57, s57, 10")
        k(f"s_add_u32 {sr(S_PS)}, s57, {P_OFF}")
        k("s_lshl_b32 s57, s56, 3")
        k(f"s_lshl_b32 s58, {sr(S_W)}, 1")
        k("s_add_u32 s57, s57, s58")
        k(f"s_lshl_b32 {sr(S_SS)}, s57, 10")
        k(f"s_add_u32 {sr(S_SS)}, {sr(S_SS)}, {ST_OFF}")
        k("s_lshl_b32 s57, s57, 5")
        k(f"s_add_u32 s57, s57, {PF_OFF}")
        k(f"v_lshlrev_b32 v9, 3, {vr(V_LANE)}")
        k("v_add_u32 v9, s57, v9")
        k(f"v_lshrrev_b32 v60, 5, {vr(V_LANE)}")
        k("v_lshl_add_u32 v8, v60, 10, v8")
        WA = 4
        k("v_lshlrev_b32 v61, 1, v60")
        k(f"v_xor_b32 v61, v61, {vr(V_LANE)}")
        k(f"s_mul_i32 s56, {sr(S_W)}, 24576")
        for g in range(4):
            k(f"v_xor_b32 v62, {g<<2}, v61")
            k("v_lshlrev_b32 v62, 4, v62")
            k("v_add_u32 v62, s56, v62")
            k(f"v_add_u32 {vr(WA+g)}, {g*1024}, v62")
        RA = 11
        k(f"v_and_b32 v60, 1, {vr(V_LANE)}")
        k(f"v_lshrrev_b32 v61, 1, {vr(V_LANE)}")
        k("v_and_b32 v61, 3, v61")
        k("v_lshl_add_u32 v62, v60, 5, v14")
        k("v_lshlrev_b32 v63, 2, v61")
        k("v_xor_b32 v62, v62, v63")
        k("v_lshlrev_b32 v63, 1, v60")
        k("v_xor_b32 v62, v62, v63")
        k("v_lshlrev_b32 v62, 4, v62")
        k(f"v_lshl_add_u32 {vr(RA)}, v61, 10, v62")
        k(f"v_add_u32 v15, 49152, {vr(RA)}")
        MLR = 14
        k(f"v_lshlrev_b32 {vr(MLR)}, 5, v14")
        k(f"v_add_u32 {vr(MLR)}, {self.ML_LDS}, {vr(MLR)}")
        GT, XR = 16, 28
        k.wait_vm(("P", 1))
        k("s_add_u32 s95, s95, 256")
        self.publish("s95")
        self.ts(14)
        for i in range(12):
            k(f"v_accvgpr_read_b32 {vr(GT+i)}, {ar(self.A_G+i)}")
            k(f"v_accvgpr_read_b32 {vr(XR+i)}, {ar(self.A_G+12+i)}")
        for i in range(12):
            k(f"v_add_f32 {vr(GT+i)}, {vr(GT+i)}, {vr(XR+i)}")
        for i in range(12):
            k(f"v_accvgpr_read_b32 {vr(XR+i)}, {ar(self.A_X+i)}")
        MLW = 63
        k(f"v_and_b32 {vr(MLW)}, 31, {vr(V_LANE)}")
        k(f"v_lshlrev_b32 {vr(MLW)}, 5, {vr(MLW)}")
        k(f"s_lshl_b32 s56, {sr(S_W)}, 3")
        k(f"s_add_u32 s56, s56, {self.ML_LDS}")
        k(f"v_add_u32 {vr(MLW)}, s56, {vr(MLW)}")
        PR = [64, 128]
        SR_ = [40, 48]

        def p_loads(sub):
            for s4 in range(4):
                k(f"s_add_u32 {sr(S_O)}, {sr(S_PS)}, {sub*65536 + s4*4096}")
                for i in range(4):
                    k.vmem(f"buffer_load_dwordx4 {vr(PR[sub]+4*(4*s4+i),4)}, {vr(V_L16)}, {sr(SWS,4)}, {sr(S_O)} "
                           f"offen offset:{i*1024} sc1", ("P", sub))
            k(f"s_add_u32 {sr(S_O)}, {sr(S_SS)}, {sub*8192}")
            for pw in range(4):
                k.vmem(f"buffer_load_dwordx2 {vr(SR_[sub]+2*pw,2)}, v8, {sr(SWS,4)}, {sr(S_O)} offen "
                       f"offset:{pw*256} sc1", ("S", sub))
        self.spin_at(12, 9, "s_mov_b64 exec, 0xff")
        p_loads(0)
        self.spin_at(12, 9, "s_mov_b64 exec, 0xff", off=256)
        p_loads(1)
        self.ts(12)
        F = [56, 58]

        def factor_ops(sub):
            S = SR_[sub]
            f0, f1 = F[sub], F[sub] + 1
            ops = []

            def e(line):
                ops.append(lambda: k(line))
            ops.append(lambda: k.wait_vm(("S", sub)))
            e(f"v_add_f32 {vr(S+1)}, {vr(S+1)}, {vr(S+3)}")
            e(f"v_add_f32 {vr(S+5)}, {vr(S+5)}, {vr(S+7)}")
            e(f"v_mov_b32 {vr(S+2)}, {vr(S)}")
            e(f"v_add_f32 {vr(S+1)}, {vr(S+1)}, {vr(S+5)}")
            e(f"v_permlane32_swap_b32 {vr(S+2)}, {vr(S)}")
            e(f"v_mov_b32 {vr(S+3)}, {vr(S+1)}")
            e(f"v_max_f32 {vr(S+4)}, {vr(S+2)}, {vr(S)}")
            e(f"v_permlane32_swap_b32 {vr(S+3)}, {vr(S+1)}")
            e(f"v_sub_f32 {vr(f0)}, {vr(S+2)}, {vr(S+4)}")
            e(f"v_sub_f32 {vr(f1)}, {vr(S)}, {vr(S+4)}")
            e(f"v_exp_f32 {vr(f0)}, {vr(f0)}")
            e(f"v_exp_f32 {vr(f1)}, {vr(f1)}")
            e(f"s_nop 0")
            e(f"v_mul_f32 {vr(S+5)}, {vr(f0)}, {vr(S+3)}")
            e(f"v_fmac_f32 {vr(S+5)}, {vr(f1)}, {vr(S+1)}")
            ops.append(lambda: k.ds(f"ds_write_b64 {vr(MLW)}, {vr(S+4,2)} offset:{sub*1024}", ("ml", sub)))
            return ops

        TMP = [[192, 208], [224, 240]]

        def scale_ops(sub, j):
            tile = 3 * sub + j
            t0, t1 = TMP[tile % 2]
            ops = []
            for g in range(4):
                for x in range(4 * g, 4 * g + 4):
                    ops.append(lambda x=x: k(f"v_mul_f32 {vr(t0+x)}, {vr(F[sub])}, {vr(t0+x)}"))
                for x in range(4 * g, 4 * g + 4):
                    ops.append(lambda x=x: k(f"v_fmac_f32 {vr(t0+x)}, {vr(F[sub]+1)}, {vr(t1+x)}"))
                ops.append(lambda g=g: k.ds(f"ds_write_b128 {vr(WA+g)}, {vr(t0+4*g,4)} offset:{tile*4096}",
                                            ("img", sub)))
            return ops

        def fin_ops(sub):
            ops = []

            def e(line):
                ops.append(lambda: k(line))
            C = SR_[sub]
            ML = 96
            for i in range(2):
                ops.append(lambda i=i: k.ds(f"ds_read_b128 {vr(ML+4*i,4)}, {vr(MLR)} offset:{sub*1024+16*i}",
                                            ("mlr", sub)))
            RB = [64, 80]

            def reads(j):
                R = RB[j % 2]
                tile = 3 * sub + j
                for src in range(4):
                    ops.append(lambda src=src: k.ds(
                        f"ds_read_b128 {vr(R+4*src,4)}, {vr(RA if src < 2 else 15)} "
                        f"offset:{(src%2)*24576+tile*4096}", ("fr", sub, j)))
            reads(0)
            ops.append(lambda: k.wait_lg(("mlr", sub)))
            e(f"v_max3_f32 {vr(C+4)}, {vr(ML)}, {vr(ML+2)}, {vr(ML+4)}")
            e(f"v_max_f32 {vr(C+4)}, {vr(C+4)}, {vr(ML+6)}")
            for w in range(4):
                e(f"v_sub_f32 {vr(C+w)}, {vr(ML+2*w)}, {vr(C+4)}")
            for w in range(4):
                e(f"v_exp_f32 {vr(C+w)}, {vr(C+w)}")
            e("s_nop 0")
            e(f"v_mul_f32 {vr(C+5)}, {vr(C)}, {vr(ML+1)}")
            for w in range(1, 4):
                e(f"v_fmac_f32 {vr(C+5)}, {vr(C+w)}, {vr(ML+2*w+1)}")
            e(f"v_rcp_f32 {vr(C+5)}, {vr(C+5)}")
            e("s_nop 0")
            for w in range(4):
                e(f"v_mul_f32 {vr(C+w)}, {vr(C+w)}, {vr(C+5)}")
            for j in range(3):
                R = RB[j % 2]
                tile = 3 * sub + j
                if j + 1 < 3:
                    reads(j + 1)
                ops.append(lambda j=j: k.wait_lg(("fr", sub, j)))
                for x in range(4):
                    e(f"v_mul_f32 {vr(R+x)}, {vr(C)}, {vr(R+x)}")
                for src in range(1, 4):
                    for x in range(4):
                        e(f"v_fmac_f32 {vr(R+x)}, {vr(C+src)}, {vr(R+4*src+x)}")
                xr = XR + 2 * tile
                e(f"v_lshlrev_b32 {vr(R+4)}, 16, {vr(xr)}")
                e(f"v_and_b32 {vr(R+5)}, {sr(S_MASK)}, {vr(xr)}")
                e(f"v_lshlrev_b32 {vr(R+6)}, 16, {vr(xr+1)}")
                e(f"v_and_b32 {vr(R+7)}, {sr(S_MASK)}, {vr(xr+1)}")
                for x in range(4):
                    e(f"v_fmac_f32 {vr(R+4+x)}, {vr(GT+4*j+x)}, {vr(R+x)}")
                e(f"v_cvt_pk_bf16_f32 {vr(xr)}, {vr(R+4)}, {vr(R+5)}")
                e(f"v_cvt_pk_bf16_f32 {vr(xr+1)}, {vr(R+6)}, {vr(R+7)}")

                def st(j=j, xr=xr):
                    if j == 0:
                        k(f"s_add_u32 s56, {sr(S_XO)}, {sub*32*1536}")
                    k.vmem(f"buffer_store_dwordx2 {vr(xr,2)}, {vr(GO)}, {sr(SOUT,4)}, s56 offen offset:{j*64}"
                           f"{self.out_policy}", "out")
                ops.append(st)
            return ops

        q_scale, q_other = [], factor_ops(0)
        groups = [(sub, j) for sub in range(2) for j in range(3)]
        k.wait_vm(("P", 0))
        for gi, (sub, j) in enumerate(groups):
            t0, t1 = TMP[gi % 2]
            if (sub, j) == (1, 0):
                k.wait_vm(("P", 1))
            for n in range(16):
                t, s = n % 2, n // 2
                ss = 8 * t + s
                tmp = (t0, t1)[t]
                cc = "0" if s == 0 else vr(tmp, 16)
                k(f"v_mfma_f32_32x32x16_bf16 {vr(tmp,16)}, {ar((j*16+ss)*4,4)}, {vr(PR[sub]+4*ss,4)}, {cc}")
                if n == 3:
                    if gi >= 1:
                        q_scale += scale_ops(*groups[gi - 1])
                    if gi == 3:
                        def bar0():
                            k.wait_lg(("img", 0))
                            k("s_barrier")
                        q_other.append(bar0)
                        q_other += fin_ops(0)
                if gi == 2 and n == 12:
                    q_other += factor_ops(1)
                m = 3 if gi < 3 else 5
                while (q_scale or q_other) and m:
                    (q_scale or q_other).pop(0)()
                    m -= 1
            while q_scale:
                q_scale.pop(0)()
            if gi in (0, 2):
                while q_other:
                    q_other.pop(0)()
        while q_other:
            q_other.pop(0)()
        for f in scale_ops(1, 2):
            f()
        k.wait_lg_all()
        k("s_barrier")
        for f in fin_ops(1):
            f()

    def build(self):
        k = self.k
        self.prologue()
        la, lw, lb = "L_A_gemv", "L_A_w", "L_A_done"
        k(f"s_cmp_ge_u32 {sr(S_IDX)}, 24")
        k(f"s_cbranch_scc1 {la}")
        if "noln" not in self.opts:
            self.x_loads()
        self.srd(SQKV, 8, 768 * 2304 * 2, bias=4096)
        sv = list(k.vm)
        k(f"s_cmp_ge_u32 {sr(S_XCD)}, 4")
        k(f"s_cbranch_scc1 {lw}")
        self.phase_a_gemm(0)
        k(f"s_branch {lb}")
        k.label(lw)
        k.reset_counts()
        k.vm = list(sv)
        self.srd(SWO, 10, 768 * 768 * 2, bias=4096)
        self.phase_a_gemm(1)
        k(f"s_branch {lb}")
        k.label(la)
        k.reset_counts()
        if "nogemv" in self.opts:
            k("s_branch L_fin")
        self.srd(SC, 6, 2 * 768 * 2)
        self.srd(SWM, 12, 768 * 4608 * 2)
        self.x_loads()
        self.phase_a_gemv()
        k.label(lb)
        k.reset_counts()
        self.srd(SOUT, 14, 2 * 1024 * 768 * 2)
        if self.stop_after == "A":
            k("s_waitcnt vmcnt(0)")
            np_ = k.newlabel("np")
            k(f"s_cmp_eq_u32 {sr(S_PEND)}, 0")
            k(f"s_cbranch_scc1 {np_}")
            self.publish(sr(S_PEND))
            k.label(np_)
        else:
            self.phase_b_pre()
            self.phase_b()
            if self.stop_after == "B":
                k.wait_vm_all()
                self.publish(sr(S_PEND))
                self.ts(10)
            else:
                self.phase_c()
                if self.stop_after != "C":
                    self.phase_d()
                else:
                    k.wait_vm_all()
                    k("s_add_u32 s95, s95, 256")
                    self.publish("s95")
        k.label("L_fin")
        k.wait_vm_all()
        self.ts(15)
        self.ts_dump()
        k.label("L_end")
        k("s_endpgm")
        k.label("L_codeend")
        body = k.finalize()
        hdr = f"""; DiT adaLN attention block: persistent single-launch kernel (generated by work/gen2.py)
; @launch grid=(256,1,1) block=(256,1,1) lds=163840
.amdgcn_target "amdgcn-amd-amdhsa--gfx950"
.text
.globl {NAME}_kernel
.p2align 8
.type {NAME}_kernel,@function
{NAME}_kernel:
"""
        ftr = f""".section .rodata,"a"
.p2align 6
.amdhsa_kernel {NAME}_kernel
  .amdhsa_next_free_vgpr 512
  .amdhsa_next_free_sgpr 102
  .amdhsa_accum_offset 256
  .amdhsa_group_segment_fixed_size 0
  .amdhsa_kernarg_size 64
  .amdhsa_user_sgpr_count 2
  .amdhsa_user_sgpr_kernarg_segment_ptr 1
  .amdhsa_system_sgpr_workgroup_id_x 1
  .amdhsa_float_denorm_mode_32 3
.end_amdhsa_kernel
"""
        return hdr + body + ftr


if __name__ == "__main__":
    import argparse
    ap = argparse.ArgumentParser()
    ap.add_argument("-o", default=f"cdna_kernels/{NAME}.s")
    ap.add_argument("--stop", default=None)
    ap.add_argument("--ts", action="store_true")
    ap.add_argument("--opt", action="append", default=[])
    a = ap.parse_args()
    g = Gen(stop_after=a.stop, ts=a.ts, opts=a.opt)
    s = g.build()
    open(a.o, "w").write(s)
    print("wrote", a.o, len(s), "bytes;", g.k.nops_inserted, "nop sites,", g.k.nop_states, "states")
```

```python
import sys
import os
import struct
sys.path.insert(0, os.path.dirname(os.path.abspath(__file__)))
from asmlib import Asm, vr, ar, sr

NAME = "standalone__dit_adaln_block__diffusion"

WTS_OFF = 0x000000
WB_STRIDE = 16 * 48 * 3072
UP_OFF = 0x480000
UP_DUMMY = 0x4B0000
XN_OFF = 0x500000
T_OFF = 0x800000
VT_OFF = 0xB00000
P_OFF = 0xE00000
ST_OFF = 0x1200000
MOD_OFF = 0x1280000
MODT_OFF = 0x1290000
FL_OFF = 0x12A0000
XF_OFF = FL_OFF + 0x0000
MF_OFF = FL_OFF + 0x2000
WF_OFF = FL_OFF + 0x3000
TF_OFF = FL_OFF + 0x5000
VF_OFF = FL_OFF + 0x6000
PF_OFF = FL_OFF + 0x7000
TS_OFF = 0x12B0000
WS_USED = 0x1400000

QSCALE = 0.036084391824351615 * 1.4426950408889634

S_WG = 2
S_W = 3
SX, SC, SQKV, SWO, SWM, SOUT, SDBG, SWS = 20, 24, 28, 32, 36, 40, 44, 48
S_XCD, S_IDX = 52, 53
S_R, S_CB = 54, 55
S_TS = 70
S_CLK = 86
S_SPIN = 88
S_PEND = 89
S_WISS = 90
S_MASK = 91
S_LINK = 92
S_PC = 96

V_LANE, V_L16, V_N = 0, 1, 2

SPIN_MAX = 0x40000
LNBUF = 143360
UL_LDS = 147456
UF_LDS = 149504


def f32hex(x):
    return "0x%08x" % struct.unpack("<I", struct.pack("<f", x))[0]


class Gen:
    def __init__(self, stop_after=None, ts=False, opts=()):
        self.opts = set(opts)
        self.k = Asm()
        self.stop_after = stop_after
        self.ts_on = bool(ts)
        self.tsel = [int(x) for x in ts.split(",")] if ts else []
        assert len(self.tsel) <= 7
        def opt(name, dflt):
            for o in self.opts:
                if o.startswith(name + "="):
                    return int(o[len(name) + 1:])
            return dflt
        self.lnstart = opt("lnstart", 140)
        self.lnevery = opt("lnevery", 6)
        self.xfst = opt("xfst", 3)
        self.npre_ln = opt("npreln", 1)
        self.ntpre = opt("ntpre", 3)
        self.vstride = opt("vstride", 3)
        self.vstride1 = opt("vstride1", 3)
        self.smf = opt("smf", 4)
        self.NWPRE = opt("nwpre", 4)
        self.nvc = opt("nvc", 12)
        self.nv1 = opt("nv1", 8)
        self.nv2 = opt("nv2", 8)
        self.nv3 = opt("nv3", 8)
        self.NX1 = opt("nx1", 0)
        self.NX2 = opt("nx2", 48)
        self.out_policy = ""
        for o in self.opts:
            if o.startswith("out="):
                self.out_policy = " " + o[4:].replace("+", " ")

    def ts(self, i):
        if not self.ts_on or i not in self.tsel:
            return
        slot = self.tsel.index(i) + 1
        self.k(f"{'s_memtime' if 'clk' in self.opts else 's_memrealtime'} {sr(S_TS+2*slot,2)}")

    def ts_dump(self):
        if not self.ts_on:
            return
        k = self.k
        k(f"s_lshl_b32 s56, {sr(S_WG)}, 2")
        k(f"s_add_u32 s56, s56, {sr(S_W)}")
        k("s_lshl_b32 s56, s56, 8")
        k(f"s_add_u32 s56, s56, {TS_OFF}")
        k("s_waitcnt lgkmcnt(0)")
        k("v_mov_b32 v4, 0")
        k(f"v_writelane_b32 v4, {sr(S_TS)}, 0")
        for slot, j in enumerate(self.tsel):
            k(f"v_writelane_b32 v4, {sr(S_TS+2*slot+2)}, {j}")
        k(f"v_lshlrev_b32 v5, 2, {vr(V_LANE)}")
        k.vmem(f"buffer_store_dword v4, v5, {sr(SWS,4)}, s56 offen")
        if "dbg" in self.opts:
            k(f"v_readfirstlane_b32 s57, {vr(V_N)}")
            k("v_cmp_ne_u32 vcc, 0, v4")
            k("v_subrev_u32 v4, s57, v4")
            k("v_cndmask_b32 v4, 0, v4, vcc")
            k("v_max_i32 v4, 0, v4")
            k("s_mov_b64 exec, 0xfffc")
            k.vmem(f"buffer_atomic_umax v4, v5, {sr(SDBG,4)}, 0 offen sc1")
        k("s_mov_b64 exec, -1")

    def publish(self, soff):
        k = self.k
        k("s_mov_b64 exec, 1")
        k.vmem(f"buffer_store_dwordx2 {vr(V_N,2)}, off, {sr(SWS,4)}, {soff} sc1", "flag")
        k("s_mov_b64 exec, -1")

    def poll_issue(self, vdst, voff, mask, tag):
        k = self.k
        k(f"s_mov_b64 exec, {mask}")
        k.vmem(f"buffer_load_dwordx2 {vr(vdst,2)}, {vr(voff)}, {sr(SWS,4)}, 0 offen sc1", tag)
        k("s_mov_b64 exec, -1")

    def poll_eval(self, vdst, mask):
        k = self.k
        k(f"s_mov_b64 exec, {mask}")
        k(f"v_cmp_ne_u64 vcc, {vr(vdst,2)}, {vr(V_N,2)}")
        k("s_mov_b64 exec, -1")

    def spin(self, vdst, voff, mask):
        k = self.k
        loop = k.newlabel("spin")
        done = k.newlabel("spun")
        k(f"s_mov_b32 {sr(S_SPIN)}, 0")
        k(f"s_mov_b64 exec, {mask}")
        k.label(loop)
        k(f"buffer_load_dwordx2 {vr(vdst,2)}, {vr(voff)}, {sr(SWS,4)}, 0 offen sc1")
        k("s_waitcnt vmcnt(0)")
        k(f"v_cmp_ne_u64 vcc, {vr(vdst,2)}, {vr(V_N,2)}")
        k(f"s_cbranch_vccz {done}")
        k(f"s_add_u32 {sr(S_SPIN)}, {sr(S_SPIN)}, 1")
        k(f"s_cmp_lt_u32 {sr(S_SPIN)}, {SPIN_MAX}")
        k(f"s_cbranch_scc1 {loop}")
        k.label(done)
        k("s_mov_b64 exec, -1")
        k.vm = []

    def nonce_issue(self):
        self.k.vmem(f"buffer_load_dwordx2 {vr(V_N,2)}, off, {sr(SDBG,4)}, 0 sc1", "nonce")

    def nonce_check(self):
        k = self.k
        ok = k.newlabel("nok")
        loop = k.newlabel("nsp")
        k(f"v_cmp_eq_u32 vcc, 0, {vr(V_N)}")
        k(f"s_cbranch_vccz {ok}")
        k(f"s_mov_b32 {sr(S_SPIN)}, 0")
        k.label(loop)
        k(f"buffer_load_dwordx2 {vr(V_N,2)}, off, {sr(SDBG,4)}, 0 sc1")
        k("s_waitcnt vmcnt(0)")
        k(f"v_cmp_eq_u32 vcc, 0, {vr(V_N)}")
        k(f"s_cbranch_vccz {ok}")
        k(f"s_add_u32 {sr(S_SPIN)}, {sr(S_SPIN)}, 1")
        k(f"s_cmp_lt_u32 {sr(S_SPIN)}, {SPIN_MAX}")
        k(f"s_cbranch_scc1 {loop}")
        k.label(ok)

    def srd(self, s, ptr, nbytes, bias=0):
        k = self.k
        if bias:
            k(f"s_sub_u32 {sr(s)}, {sr(ptr)}, {bias}")
            k(f"s_subb_u32 {sr(s+1)}, {sr(ptr+1)}, 0")
        else:
            k(f"s_mov_b32 {sr(s)}, {sr(ptr)}")
            k(f"s_mov_b32 {sr(s+1)}, {sr(ptr+1)}")
        k(f"s_mov_b32 {sr(s+2)}, {nbytes + bias}")
        k(f"s_mov_b32 {sr(s+3)}, 0x20000")

    def prologue(self):
        k = self.k
        k(f"s_cmp_ge_u32 {sr(S_WG)}, 256")
        k("s_cbranch_scc1 L_end")
        k("s_load_dwordx16 s[4:19], s[0:1], 0")
        k(f"s_memrealtime {sr(S_CLK,2)}")
        if "clk" in self.opts:
            k("s_memtime s[100:101]")
        k(f"s_getpc_b64 {sr(S_PC,2)}")
        k.label("L_pc")
        k("v_lshrrev_b32 v4, 6, v0")
        k(f"v_and_b32 {vr(V_LANE)}, 63, v0")
        k(f"v_readfirstlane_b32 {sr(S_W)}, v4")
        k(f"v_lshlrev_b32 {vr(V_L16)}, 4, {vr(V_LANE)}")
        k(f"s_sub_u32 {sr(S_PC)}, {sr(S_PC)}, L_pc-{NAME}_kernel")
        k(f"s_subb_u32 {sr(S_PC+1)}, {sr(S_PC+1)}, 0")
        k(f"s_mov_b32 {sr(S_PC+2)}, L_codeend-{NAME}_kernel")
        k(f"s_mov_b32 {sr(S_PC+3)}, 0x20000")
        k(f"s_and_b32 {sr(S_XCD)}, {sr(S_WG)}, 7")
        k(f"s_lshr_b32 {sr(S_IDX)}, {sr(S_WG)}, 3")
        k(f"s_mov_b32 {sr(S_MASK)}, 0xffff0000")
        k(f"s_lshl_b32 s56, {sr(S_WG)}, 2")
        k(f"s_add_u32 s56, s56, {sr(S_W)}")
        k("s_mul_i32 s56, s56, 3072")
        k(f"v_lshlrev_b32 v4, 3, {vr(V_LANE)}")
        k("s_waitcnt lgkmcnt(0)")
        self.srd(SX, 4, 2 * 1024 * 768 * 2)
        self.srd(SWS, 18, WS_USED)
        self.srd(SDBG, 16, 256)
        skip = k.newlabel("nn")
        k(f"s_or_b32 s57, {sr(S_WG)}, {sr(S_W)}")
        k("s_cmp_eq_u32 s57, 0")
        k(f"s_cbranch_scc0 {skip}")
        k(f"s_or_b32 s57, {sr(S_CLK)}, 1")
        k(f"v_mov_b32 {vr(V_N)}, s57")
        k(f"v_mov_b32 {vr(V_N+1)}, {sr(S_CLK+1)}")
        k("s_mov_b64 exec, 1")
        k(f"buffer_store_dwordx2 {vr(V_N,2)}, off, {sr(SDBG,4)}, 0 sc1")
        k("s_mov_b64 exec, -1")
        k.label(skip)
        if self.ts_on:
            k(f"s_mov_b32 {sr(S_TS)}, {'s100' if 'clk' in self.opts else sr(S_CLK)}")
            for j in range(2, 16):
                k(f"s_mov_b32 {sr(S_TS+j)}, 0")
            if "tsA" in self.opts:
                self.ts(4)

    VX = 64

    def x_loads(self):
        k = self.k
        for i in range(2):
            for q in range(3):
                off = i * 1536 + q * 512
                k.vmem(f"buffer_load_dwordx2 {vr(self.VX+6*i+2*q,2)}, v4, {sr(SX,4)}, s56 offen offset:{off} nt",
                       "x")

    def roles(self):
        k = self.k
        k(f"s_lshr_b32 s57, {sr(S_XCD)}, 1")
        k("s_lshl_b32 s57, s57, 2")
        k(f"s_and_b32 s58, {sr(S_IDX)}, 3")
        k(f"s_add_u32 {sr(S_R)}, s57, s58")
        k(f"s_and_b32 s57, {sr(S_XCD)}, 1")
        k("s_lshl_b32 s57, s57, 3")
        k(f"s_lshr_b32 s58, {sr(S_IDX)}, 2")
        k(f"s_add_u32 {sr(S_CB)}, s57, s58")

    def code_prefetch(self):
        k = self.k
        k(f"s_lshl_b32 s56, {sr(S_IDX)}, 2")
        k(f"s_add_u32 s56, s56, {sr(S_W)}")
        k("s_lshl_b32 s56, s56, 10")
        k(f"v_add_u32 v148, s56, {vr(V_L16)}")
        k.vmem(f"buffer_load_dwordx4 v[148:151], v148, {sr(S_PC,4)}, 0 offen", "pf")

    def ln8_ops(self):
        k = self.k
        VX, Y = self.VX, 76
        T0 = 112
        p1, p2 = [], []

        def e(line, lst=p1):
            lst.append(lambda: k(line))
        p1.append(lambda: k.wait_vm("x"))
        for i in range(2):
            for n in range(6):
                e(f"v_lshlrev_b32 {vr(Y+12*i+2*n)}, 16, {vr(VX+6*i+n)}")
                e(f"v_and_b32 {vr(Y+12*i+2*n+1)}, {sr(S_MASK)}, {vr(VX+6*i+n)}")
        SM = T0
        for i in range(2):
            e(f"v_pk_add_f32 {vr(SM+2*i,2)}, {vr(Y+12*i,2)}, {vr(Y+12*i+2,2)}")
        for n in range(2, 6):
            for i in range(2):
                e(f"v_pk_add_f32 {vr(SM+2*i,2)}, {vr(SM+2*i,2)}, {vr(Y+12*i+2*n,2)}")
        for i in range(2):
            e(f"v_add_f32 {vr(SM+2*i)}, {vr(SM+2*i)}, {vr(SM+2*i+1)}")

        def wave_sum(extra):
            extra = list(extra)
            for mod in ("quad_perm:[1,0,3,2] row_mask:0xf bank_mask:0xf",
                        "quad_perm:[2,3,0,1] row_mask:0xf bank_mask:0xf",
                        "row_half_mirror row_mask:0xf bank_mask:0xf",
                        "row_mirror row_mask:0xf bank_mask:0xf",
                        "row_bcast:15 row_mask:0xa bank_mask:0xf",
                        "row_bcast:31 row_mask:0xc bank_mask:0xf"):
                for i in range(2):
                    e(f"v_add_f32_dpp {vr(SM+2*i)}, {vr(SM+2*i)}, {vr(SM+2*i)} {mod}")
                if extra:
                    e(extra.pop(0))
            for x in extra:
                e(x)
        WA = T0 + 4
        A, B_, C, D_ = T0 + 6, T0 + 7, T0 + 8, T0 + 9
        wave_sum([f"v_lshrrev_b32 {vr(A)}, 2, {vr(V_LANE)}",
                  f"v_and_b32 {vr(B_)}, 1, {vr(V_LANE)}",
                  f"v_lshl_or_b32 {vr(C)}, {vr(A)}, 1, {vr(B_)}",
                  f"v_and_b32 {vr(D_)}, 7, {vr(C)}",
                  f"v_lshlrev_b32 {vr(C)}, 7, {vr(C)}",
                  f"v_and_b32 {vr(B_)}, 2, {vr(V_LANE)}",
                  f"v_lshl_add_u32 {vr(C)}, {vr(B_)}, 2, {vr(C)}",
                  f"v_add_u32 {vr(C)}, {LNBUF}, {vr(C)}",
                  f"s_lshl_b32 s57, {sr(S_W)}, 1",
                  f"s_mov_b32 s58, {f32hex(1.0/768)}"])
        for i in range(2):
            e(f"v_mul_f32 {vr(SM+2*i)}, s58, {vr(SM+2*i)}")
        e(f"v_xor_b32 {vr(B_)}, s57, {vr(D_)}")
        e(f"v_lshl_add_u32 {vr(WA)}, {vr(B_)}, 4, {vr(C)}")
        for i in range(2):
            e(f"v_readlane_b32 {sr(60+2*i)}, {vr(SM+2*i)}, 63")
        e(f"v_xor_b32 {vr(B_)}, 1, {vr(B_)}")
        e(f"v_lshl_add_u32 {vr(WA+1)}, {vr(B_)}, 4, {vr(C)}")
        for n in range(6):
            for i in range(2):
                e(f"v_pk_add_f32 {vr(Y+12*i+2*n,2)}, {vr(Y+12*i+2*n,2)}, {sr(60+2*i,2)} "
                  f"op_sel_hi:[1,0] neg_lo:[0,1] neg_hi:[0,1]")
        for i in range(2):
            e(f"v_pk_mul_f32 {vr(SM+2*i,2)}, {vr(Y+12*i,2)}, {vr(Y+12*i,2)}")
        for n in range(1, 6):
            for i in range(2):
                e(f"v_pk_fma_f32 {vr(SM+2*i,2)}, {vr(Y+12*i+2*n,2)}, {vr(Y+12*i+2*n,2)}, {vr(SM+2*i,2)}")
        for i in range(2):
            e(f"v_add_f32 {vr(SM+2*i)}, {vr(SM+2*i)}, {vr(SM+2*i+1)}")
        ROW, SEG, RA_, GO = T0 + 10, T0 + 11, T0 + 12, T0 + 13
        wave_sum([f"v_and_b32 {vr(ROW)}, 7, {vr(V_LANE)}",
                  f"v_lshrrev_b32 {vr(SEG)}, 3, {vr(V_LANE)}",
                  f"v_xor_b32 {vr(RA_)}, {vr(ROW)}, {vr(SEG)}",
                  f"v_lshlrev_b32 {vr(RA_)}, 4, {vr(RA_)}",
                  f"v_lshl_add_u32 {vr(RA_)}, {vr(SEG)}, 7, {vr(RA_)}",
                  f"v_mov_b32 {vr(B_)}, {f32hex(1e-5)}"])
        for i in range(2):
            e(f"v_fma_f32 {vr(SM+2*i)}, {vr(SM+2*i)}, s58, {vr(B_)}")
        for i in range(2):
            e(f"v_rsq_f32 {vr(SM+2*i)}, {vr(SM+2*i)}")
        e(f"s_mul_i32 s57, {sr(S_W)}, 3072")
        e(f"s_add_u32 s57, s57, {LNBUF}")
        e(f"v_add_u32 {vr(RA_)}, s57, {vr(RA_)}")
        for i in range(2):
            e(f"v_readlane_b32 {sr(60+2*i)}, {vr(SM+2*i)}, 63")
        e(f"v_lshrrev_b32 {vr(GO)}, 1, {vr(SEG)}")
        e(f"v_lshlrev_b32 {vr(GO)}, 10, {vr(GO)}")
        e(f"v_and_b32 {vr(SEG)}, 1, {vr(SEG)}")
        for n in range(6):
            for i in range(2):
                e(f"v_pk_mul_f32 {vr(Y+12*i+2*n,2)}, {vr(Y+12*i+2*n,2)}, {sr(60+2*i,2)} op_sel_hi:[1,0]")
        e(f"v_lshl_add_u32 {vr(GO)}, {vr(SEG)}, 9, {vr(GO)}")
        e(f"v_lshl_add_u32 {vr(GO)}, {vr(ROW)}, 4, {vr(GO)}")
        for i in range(2):
            for n in range(6):
                e(f"v_cvt_pk_bf16_f32 {vr(VX+6*i+n)}, {vr(Y+12*i+2*n)}, {vr(Y+12*i+2*n+1)}")
            for q in range(3):
                p1.append(lambda i=i, q=q: k.ds(f"ds_write_b64 {vr(WA+i)}, {vr(VX+6*i+2*q,2)} offset:{q*4096}", "lnw"))
        e(f"s_lshr_b32 s57, {sr(S_WG)}, 2")
        e("s_mul_i32 s57, s57, 49152")
        e(f"s_mul_i32 s58, {sr(S_W)}, 12288")
        e("s_add_u32 s57, s57, s58")
        e(f"s_and_b32 s58, {sr(S_WG)}, 3")
        e("s_lshl_b32 s58, s58, 7")
        e("s_add_u32 s57, s57, s58")
        e(f"s_add_u32 s57, s57, {XN_OFF}")
        RB = T0 + 16
        for i in range(3):
            p2.append(lambda i=i: k.ds(f"ds_read_b128 {vr(RB+4*i,4)}, {vr(RA_)} offset:{i*1024}", ("ln", i)))
        for i in range(3):
            def st(i=i):
                k.wait_lg(("ln", i))
                k.vmem(f"buffer_store_dwordx4 {vr(RB+4*i,4)}, {vr(GO)}, {sr(SWS,4)}, s57 offen sc1", "xn")
                if i < 2:
                    k("s_add_u32 s57, s57, 4096")
            p2.append(st)
        return p1, p2

    def ln8(self, fillers=(), every=8):
        k = self.k
        p1, p2 = self.ln8_ops()
        fillers = list(fillers)
        for n, f in enumerate(p1):
            f()
            if fillers and n % every == every - 1:
                fillers.pop(0)()
        while fillers:
            fillers.pop(0)()
        k.wait_lg("lnw")
        k("s_barrier")
        for f in p2:
            f()

    def xf_offset(self, dst):
        k = self.k
        k(f"s_lshl_b32 {dst}, {sr(S_WG)}, 2")
        k(f"s_add_u32 {dst}, {dst}, {sr(S_W)}")
        k(f"s_lshl_b32 {dst}, {dst}, 3")
        k(f"s_add_u32 {dst}, {dst}, {XF_OFF}")

    def xf_poll_addr(self, v):
        k = self.k
        k(f"s_lshl_b32 s57, {sr(S_R)}, 2")
        k(f"s_add_u32 s57, s57, {sr(S_W)}")
        k("s_lshl_b32 s57, s57, 7")
        k(f"s_add_u32 s57, s57, {XF_OFF}")
        k(f"v_lshlrev_b32 {vr(v)}, 3, {vr(V_LANE)}")
        k(f"v_add_u32 {vr(v)}, s57, {vr(v)}")

    def phase_a_gemm(self, mat):
        k = self.k
        S_CBM, S_IB, S_M0A, S_M0B, S_OA, S_OB, S_II, S_KH, S_KS = 64, 65, 66, 67, 68, 69, 94, 95, 59
        S_A0, S_B0 = 60, 61
        k(f"s_and_b32 s57, {sr(S_XCD)}, 1")
        k("s_lshl_b32 s57, s57, 2")
        k(f"s_and_b32 s58, {sr(S_IDX)}, 3")
        k(f"s_add_u32 {sr(S_CBM)}, s58, s57")
        k(f"s_lshr_b32 s57, {sr(S_XCD)}, 1")
        k("s_and_b32 s57, s57, 1")
        k("s_mul_i32 s57, s57, 6")
        k(f"s_lshr_b32 s62, {sr(S_IDX)}, 2")
        k(f"s_add_u32 {sr(S_IB)}, s62, s57")
        k("s_mul_i32 s58, s58, 3")
        k("s_lshl_b32 s62, s62, 1")
        k(f"s_add_u32 {sr(S_KS)}, s58, s62")
        k(f"s_cmp_ge_u32 {sr(S_KS)}, 12")
        k("s_cselect_b32 s58, 12, 0")
        k(f"s_sub_u32 {sr(S_KS)}, {sr(S_KS)}, s58")
        if "norot" in self.opts:
            k(f"s_mov_b32 {sr(S_KS)}, 0")
        k(f"s_and_b32 {sr(S_II)}, {sr(S_W)}, 1")
        k(f"s_lshr_b32 {sr(S_KH)}, {sr(S_W)}, 1")
        BIAS = 4096
        k(f"s_mul_i32 {sr(S_A0)}, {sr(S_IB)}, {64*4608}")
        k(f"s_mul_i32 s57, {sr(S_W)}, {16*4608}")
        k(f"s_add_u32 {sr(S_A0)}, {sr(S_A0)}, s57")
        k(f"s_add_u32 {sr(S_A0)}, {sr(S_A0)}, {BIAS + (3072 if mat else 0)}")
        VA, VB = 4, 6
        k(f"v_lshrrev_b32 v9, 3, {vr(V_LANE)}")
        k(f"v_and_b32 v10, 7, {vr(V_LANE)}")
        k(f"v_lshrrev_b32 v11, 4, {vr(V_LANE)}")
        k("v_mul_u32_u24 v12, 4608, v9")
        k("v_xor_b32 v13, v10, v11")
        k("v_xor_b32 v14, 4, v13")
        k("v_lshl_add_u32 v13, v13, 4, v12")
        k("v_lshl_add_u32 v14, v14, 4, v12")
        k(f"v_add_u32 {vr(VA)}, {sr(S_A0)}, v13")
        k(f"s_add_u32 s57, {sr(S_A0)}, {8*4608 - 1024}")
        k(f"v_add_u32 {vr(VA+1)}, s57, v14")
        if mat == 0:
            k(f"s_mul_i32 {sr(S_B0)}, {sr(S_CBM)}, {96*4608}")
            k(f"s_mul_i32 s57, {sr(S_W)}, {24*4608}")
            k(f"s_add_u32 {sr(S_B0)}, {sr(S_B0)}, s57")
            k(f"s_add_u32 {sr(S_B0)}, {sr(S_B0)}, {1536 + BIAS}")
            k(f"s_cmp_eq_u32 {sr(S_II)}, 0")
            k("s_cselect_b64 vcc, -1, 0")
            k("v_cndmask_b32 v15, v14, v13, vcc")
            k("v_cndmask_b32 v9, v13, v14, vcc")
            k(f"v_add_u32 {vr(VB)}, {sr(S_B0)}, v15")
            k(f"s_add_u32 s57, {sr(S_B0)}, {8*4608 - 1024}")
            k(f"v_add_u32 {vr(VB+1)}, s57, v9")
            k(f"s_add_u32 s57, {sr(S_B0)}, {16*4608 - 2048}")
            k(f"v_add_u32 {vr(VB+2)}, s57, v15")
        else:
            k(f"v_lshrrev_b32 v15, 2, {vr(V_LANE)}")
            k("v_mul_u32_u24 v15, 1536, v15")
            k(f"v_and_b32 v9, 3, {vr(V_LANE)}")
            k("v_lshl_add_u32 v15, v9, 4, v15")
            k(f"s_mul_i32 {sr(S_B0)}, {sr(S_CBM)}, 192")
            for i in range(3):
                k(f"s_mul_i32 s57, {sr(S_W)}, 3")
                k(f"s_add_u32 s57, s57, {i}")
                k("s_lshr_b32 s58, s57, 2")
                k("s_and_b32 s57, s57, 3")
                k(f"s_mul_i32 s57, s57, {16*1536}")
                k("s_lshl_b32 s58, s58, 6")
                k("s_add_u32 s57, s57, s58")
                k(f"s_add_u32 s57, s57, {sr(S_B0)}")
                k(f"s_add_u32 s57, s57, {BIAS - 1024*i}")
                k(f"v_add_u32 {vr(VB+i)}, s57, v15")
        k(f"s_lshl_b32 {sr(S_M0A)}, {sr(S_W)}, 11")
        k(f"s_mul_i32 {sr(S_M0B)}, {sr(S_W)}, 3072")
        k(f"s_add_u32 {sr(S_M0B)}, {sr(S_M0B)}, 8192")
        SB = SQKV if mat == 0 else SWO

        def issue_ops(st):
            sl = st % 7
            ops = []

            def a0():
                k(f"s_lshl_b32 {sr(S_OA)}, {sr(S_KS)}, 7")
                if mat:
                    k(f"s_mul_i32 {sr(S_OB)}, {sr(S_KS)}, {64*1536}")
                k(f"s_add_u32 m0, {sr(S_M0A)}, {sl*20480}")
                k.vmem(f"buffer_load_dwordx4 {vr(VA)}, {sr(SQKV,4)}, {sr(S_OA)} offen lds", ("A", st))

            def a1():
                k.vmem(f"buffer_load_dwordx4 {vr(VA+1)}, {sr(SQKV,4)}, {sr(S_OA)} offen offset:1024 lds", ("A", st))
            ob = S_OB if mat else S_OA

            def b(i):
                def f():
                    if i == 0:
                        k(f"s_add_u32 m0, {sr(S_M0B)}, {sl*20480}")
                    k.vmem(f"buffer_load_dwordx4 {vr(VB+i)}, {sr(SB,4)}, {sr(ob)} offen offset:{i*1024} lds",
                           ("A", st))
                    if i == 2:
                        k(f"s_add_u32 {sr(S_KS)}, {sr(S_KS)}, 1")
                        k(f"s_cmp_eq_u32 {sr(S_KS)}, 12")
                        k(f"s_cselect_b32 {sr(S_KS)}, 0, {sr(S_KS)}")
                return f
            return [a0, a1, b(0), b(1), b(2)]

        def issue(st):
            for f in issue_ops(st):
                f()

        self.ts(18)
        for st in range(2):
            issue(st)
        self.roles()
        RA, RB = 100, 106
        k(f"v_and_b32 v20, 31, {vr(V_LANE)}")
        k(f"v_lshrrev_b32 v21, 5, {vr(V_LANE)}")
        k("v_lshrrev_b32 v22, 1, v20")
        k("v_and_b32 v22, 7, v22")
        k(f"s_lshl_b32 s57, {sr(S_KH)}, 2")
        k("v_add_u32 v23, s57, v21")
        for kk in range(2):
            k(f"v_add_u32 v24, {2*kk}, v23")
            k("v_xor_b32 v24, v24, v22")
            k("v_lshlrev_b32 v24, 4, v24")
            k("v_lshl_add_u32 v24, v20, 7, v24")
            k(f"s_lshl_b32 s57, {sr(S_II)}, 12")
            k(f"v_add_u32 {vr(RA+kk*3)}, s57, v24")
            k(f"v_add_u32 {vr(RA+kk*3+1)}, 61440, {vr(RA+kk*3)}")
            k(f"v_add_u32 {vr(RA+kk*3+2)}, 122880, {vr(RA+kk*3)}")
            if mat == 0:
                k(f"v_add_u32 {vr(RB+kk*3)}, 8192, v24")
                k(f"v_add_u32 {vr(RB+kk*3+1)}, {8192+61440}, v24")
                k(f"v_add_u32 {vr(RB+kk*3+2)}, {8192+122880}, v24")
        if mat:
            k(f"v_lshrrev_b32 v24, 2, {vr(V_LANE)}")
            k("v_and_b32 v24, 3, v24")
            k("v_lshl_add_u32 v24, v21, 3, v24")
            k("v_lshlrev_b32 v24, 6, v24")
            k(f"v_lshrrev_b32 v25, 4, {vr(V_LANE)}")
            k("v_and_b32 v25, 1, v25")
            k("v_lshl_add_u32 v24, v25, 5, v24")
            k(f"v_and_b32 v25, 3, {vr(V_LANE)}")
            k("v_lshl_add_u32 v24, v25, 3, v24")
            k(f"s_lshl_b32 s57, {sr(S_KH)}, 11")
            k("s_add_u32 s57, s57, 8192")
            k(f"v_add_u32 {vr(RB)}, s57, v24")
            k(f"v_add_u32 {vr(RB+1)}, 61440, {vr(RB)}")
            k(f"v_add_u32 {vr(RB+2)}, 122880, {vr(RB)}")
        self.ts(19)
        if "noln" in self.opts:
            self.code_prefetch()
            for st in range(2, 5):
                issue(st)
        else:
            p1, p2 = self.ln8_ops()
            npre = self.npre_ln
            fl = []
            for st in range(2, 2 + npre):
                fl += issue_ops(st)
            start, every = self.lnstart, self.lnevery
            for n_, f in enumerate(p1):
                f()
                if n_ == 0:
                    self.ts(26)
                if n_ >= start and (n_ - start) % every == 0 and fl:
                    fl.pop(0)()
            self.ts(27)
            while fl:
                fl.pop(0)()
            k.wait_lg("lnw")
            k("s_barrier")
            self.ts(54)
            for f in p2:
                f()
            self.nonce_issue()
            self.code_prefetch()
            for st in range(2 + npre, 5):
                issue(st)
            self.ts(23)
        ACC = 16

        def FA(s, kk):
            return 32 * s + 4 * kk

        def FB(s, kk, j):
            return 32 * s + 8 + 12 * kk + 4 * j

        def read_ops(st):
            sl = st % 7
            win, so = sl // 3, (sl % 3) * 20480
            s = st & 1
            ops = []
            for kk in range(2):
                ops.append(lambda kk=kk: k.ds(f"ds_read_b128 {ar(FA(s,kk),4)}, {vr(RA+kk*3+win)} offset:{so}",
                                               ("r", st, kk)))
                for j in range(3):
                    d = FB(s, kk, j)
                    if mat == 0:
                        ops.append(lambda kk=kk, j=j, d=d: k.ds(
                            f"ds_read_b128 {ar(d,4)}, {vr(RB+kk*3+win)} offset:{so+j*4096}", ("r", st, kk)))
                    else:
                        for t in range(2):
                            ops.append(lambda kk=kk, j=j, d=d, t=t: k.ds(
                                f"ds_read_b64_tr_b16 {ar(d+2*t,2)}, {vr(RB+win)} "
                                f"offset:{so+j*4096+(16*kk+4*t)*64}", ("r", st, kk)))
            return ops
        MT, MA = 140, 156
        S_BW = 60

        def mt_addr():
            k(f"s_lshl_b32 s57, {sr(S_II)}, 1")
            k(f"s_add_u32 {sr(S_BW)}, s57, {sr(S_KH)}")
            k(f"s_lshl_b32 s57, {sr(S_BW)}, 4")
            k(f"s_lshl_b32 s58, {sr(S_IB)}, 6")
            k("s_add_u32 s57, s57, s58")
            k(f"v_and_b32 {vr(MA)}, 15, {vr(V_LANE)}")
            k(f"v_add_u32 {vr(MA)}, s57, {vr(MA)}")
            k(f"v_and_b32 {vr(MA+1)}, 16, {vr(V_LANE)}")
            k(f"v_mul_u32_u24 {vr(MA+1)}, 48, {vr(MA+1)}")
            k(f"v_add_u32 {vr(MA)}, {vr(MA)}, {vr(MA+1)}")
            if mat == 0:
                k(f"s_mul_i32 s57, {sr(S_CBM)}, 96")
                k("s_add_u32 s57, s57, 768")
                k(f"v_add_u32 {vr(MA+1)}, s57, {vr(V_LANE)}")
                k(f"v_subrev_u32 {vr(MA+2)}, 32, {vr(MA+1)}")
                k(f"v_cmp_gt_u32 vcc, 32, {vr(V_LANE)}")
                k(f"v_cndmask_b32 {vr(MA)}, {vr(MA+2)}, {vr(MA)}, vcc")
                k(f"v_add_u32 {vr(MA+1)}, 32, {vr(MA+1)}")
                k(f"v_lshlrev_b32 {vr(MA+1)}, 4, {vr(MA+1)}")
            k(f"v_lshlrev_b32 {vr(MA)}, 4, {vr(MA)}")
            k(f"s_mov_b32 s94, {MODT_OFF}")
            k(f"s_mov_b32 s95, {MODT_OFF + 1536*16}")

        def mt_loads(tag):
            ops = []
            for kp in range(2):
                for e_ in range(2 if mat == 0 else 1):
                    ops.append(lambda kp=kp, e_=e_: k.vmem(
                        f"buffer_load_dwordx4 {vr(MT+8*e_+4*kp,4)}, {vr(MA+e_)}, {sr(SWS,4)}, {sr(94+kp)} offen sc1",
                        tag))
            return ops

        def mt_check():
            regs = [MT + 8 * e_ + 4 * kp + 2 for e_ in range(2 if mat == 0 else 1) for kp in range(2)]
            k(f"v_cmp_ne_u64 vcc, {vr(regs[0],2)}, {vr(V_N,2)}")
            k("s_mov_b64 s[62:63], vcc")
            for r_ in regs[1:]:
                k(f"v_cmp_ne_u64 vcc, {vr(r_,2)}, {vr(V_N,2)}")
                k("s_or_b64 s[62:63], s[62:63], vcc")

        XA, XR, TA = 100, 101, 102
        XA, XR, TA = 112, 113, 114
        UW = 119
        UR_LDS = LNBUF + 4096

        def epi_addr():
            k(f"s_mul_i32 s57, {sr(S_W)}, 6144")
            k(f"v_add_u32 {vr(XA)}, s57, {vr(V_L16)}")
            k(f"s_xor_b32 s57, {sr(S_W)}, 2")
            k("s_mul_i32 s57, s57, 6144")
            k(f"v_add_u32 {vr(XR)}, s57, {vr(V_L16)}")
            k(f"s_lshl_b32 s57, {sr(S_W)}, 10")
            k(f"s_add_u32 s57, s57, {LNBUF}")
            k(f"v_lshl_add_u32 {vr(TA)}, {vr(V_LANE)}, 2, s57")
            k(f"v_lshrrev_b32 {vr(TA+1)}, 5, {vr(V_LANE)}")
            k(f"v_mul_u32_u24 {vr(UW+2)}, 384, {vr(TA+1)}")
            k(f"v_lshl_add_u32 {vr(TA+1)}, {vr(TA+1)}, 4, s57")
            k(f"v_and_b32 {vr(TA+2)}, 31, {vr(V_LANE)}")
            k(f"v_lshl_add_u32 {vr(UW+2)}, {vr(TA+2)}, 2, {vr(UW+2)}")
            k(f"v_lshl_add_u32 {vr(TA+2)}, {vr(TA+2)}, 2, s57")
            k(f"s_mul_i32 s57, {sr(S_W)}, 768")
            k(f"s_add_u32 s57, s57, {UR_LDS}")
            k(f"v_lshl_add_u32 {vr(UW)}, {vr(V_LANE)}, 2, s57")
            k(f"s_lshl_b32 s57, {sr(S_W)}, 8")
            k(f"s_add_u32 s57, s57, {UR_LDS}")
            k(f"v_lshl_add_u32 {vr(UW+1)}, {vr(V_LANE)}, 2, s57")
            k(f"s_add_u32 s57, {sr(S_CBM)}, {mat*8}")
            k("s_mul_i32 s58, s57, 48")
            k(f"s_lshl_b32 s56, {sr(S_IB)}, 2")
            k("s_add_u32 s56, s56, s58")
            k(f"s_add_u32 s56, s56, {sr(S_BW)}")
            k(f"s_mul_i32 {sr(S_OB)}, s56, 3072")
            if WTS_OFF:
                k(f"s_add_u32 {sr(S_OB)}, {sr(S_OB)}, {WTS_OFF}")
            k("s_mul_i32 s56, s57, 12")
            k(f"s_add_u32 s56, s56, {sr(S_IB)}")
            k("s_mul_i32 s56, s56, 768")
            k(f"s_lshl_b32 s58, {sr(S_W)}, 7")
            k("s_add_u32 s56, s56, s58")
            k(f"s_add_u32 s56, s56, {UP_OFF}")
            k(f"s_cmp_eq_u32 {sr(S_W)}, 3")
            k(f"s_cselect_b32 {sr(S_OA)}, {UP_DUMMY}, s56")
            k("s_lshl_b32 s57, s57, 2")
            k(f"s_add_u32 s57, s57, {sr(S_BW)}")
            k("s_lshl_b32 s57, s57, 7")
            k(f"s_lshl_b32 s58, {sr(S_IB)}, 3")
            k("s_add_u32 s57, s57, s58")
            k(f"s_add_u32 {sr(S_PEND)}, s57, {WF_OFF}")

        TK = 208
        GC = 240
        GH = 246
        FF = 160
        ne = 2 if mat == 0 else 1

        def prep1():
            lok, lsp = k.newlabel("mtok"), k.newlabel("mtsp")
            k.wait_vm("mt")
            mt_check()
            k(f"s_cbranch_scc0 {lok}")
            k(f"s_mov_b32 {sr(S_SPIN)}, 0")
            k.label(lsp)
            sv = list(k.vm)
            for f in mt_loads("mt"):
                f()
            k("s_waitcnt vmcnt(0)")
            k.vm = sv
            mt_check()
            k(f"s_cbranch_scc0 {lok}")
            k(f"s_add_u32 {sr(S_SPIN)}, {sr(S_SPIN)}, 1")
            k(f"s_cmp_lt_u32 {sr(S_SPIN)}, {SPIN_MAX}")
            k(f"s_cbranch_scc1 {lsp}")
            k.label(lok)
            self.ts(22)
            for e_ in range(ne):
                for b_ in range(2):
                    k(f"v_add_f32 {vr(MT+8*e_+b_)}, {vr(MT+8*e_+b_)}, {vr(MT+8*e_+4+b_)}")
            k(f"v_cmp_le_u32 vcc, 16, {vr(V_LANE)}")
            k(f"v_cndmask_b32 {vr(MT+2)}, 0, 1.0, vcc")
            for b_ in range(2):
                k(f"v_add_f32 {vr(MT+b_)}, {vr(MT+b_)}, {vr(MT+2)}")
                if mat == 0:
                    k(f"v_add_f32 {vr(MT+8+b_)}, 1.0, {vr(MT+8+b_)}")
            for e_ in range(ne):
                for b_ in range(2):
                    k.ds(f"ds_write_b32 {vr(TA)}, {vr(MT+8*e_+b_)} offset:{b_*512+e_*256}", "tw")

        def prep2():
            k.wait_lg("tw")
            for b_ in range(2):
                for wh in range(2):
                    for q in range(2):
                        k.ds(f"ds_read_b128 {vr(TK+16*b_+8*wh+4*q,4)}, {vr(TA+1)} "
                             f"offset:{b_*512+wh*64+q*32}", "tk")
            if mat == 0:
                for j in range(3):
                    for b_ in range(2):
                        k.ds(f"ds_read_b32 {vr(GC+2*j+b_)}, {vr(TA+2)} offset:{b_*512+128+j*128}", "gc")

        def prep3():
            if mat == 0:
                k.wait_lg("gc")
                k(f"s_mov_b32 s62, {f32hex(QSCALE)}")
                for j in range(3):
                    k(f"v_pk_mul_f32 {vr(GC+2*j,2)}, {vr(GC+2*j,2)}, s[62:63] op_sel_hi:[1,0]")
                k("s_mov_b32 s62, 0")
                k("s_mov_b32 s63, -1")
                for j in range(3):
                    k(f"v_cndmask_b32 {vr(GH+j)}, {vr(GC+2*j)}, {vr(GC+2*j+1)}, s[62:63]")
                for b_ in range(2):
                    sel = "op_sel_hi:[1,0]" if b_ == 0 else "op_sel:[0,1] op_sel_hi:[1,1]"
                    for j in range(3):
                        for e in range(4):
                            k(f"v_pk_mul_f32 {vr(FF+24*b_+8*j+2*e,2)}, {vr(TK+16*b_+8+2*e,2)}, "
                              f"{vr(GC+2*j,2)} {sel}")
            else:
                k.wait_lg("tk")

        def xf_publish():
            self.xf_offset("s57")
            self.publish("s57")

        plan = {0: [5, 6], 1: [7], 2: [8], 3: [9], 4: [10], 5: [11]}
        p1, p2 = [], []
        ln_state = 2
        LNF = 0
        k.wait_vm(("A", 0))
        self.ts(20)
        k("s_barrier")
        for f in read_ops(0):
            f()
        xn_st = None
        for st in range(12):
            s = st & 1
            nxt = read_ops(st + 1) if st + 1 < 12 else []
            per = (len(nxt) + 2) // 3 if mat else (len(nxt) + 1) // 2
            dma = []
            for x in plan.get(st, []):
                assert x - 7 < st
                dma += issue_ops(x)
            dper = -(-len(dma) // 6)
            if st + 1 < 12:
                k.wait_vm(("A", st + 1))
            if ln_state == 0 and not p1:
                k.wait_lg("lnw")
                ln_state = 1
            if st + 1 < 12:
                k("s_barrier")
            self.ts(30 + st)
            if st == self.xfst and "noln" not in self.opts:
                k.wait_vm("nonce")
                self.nonce_check()
                self.ts(21)
                xf_publish()
            for n in range(6):
                kk, j = n // 3, n % 3
                if j == 0:
                    k.wait_lg(("r", st, kk))
                c = "0" if (st == 0 and kk == 0) else vr(ACC + 16 * j, 16)
                k(f"v_mfma_f32_32x32x16_bf16 {vr(ACC+16*j,16)}, {ar(FA(s,kk),4)}, {ar(FB(s,kk,j),4)}, {c}")
                for _ in range(per):
                    if nxt:
                        nxt.pop(0)()
                cnt, m = dper, LNF
                while (dma and cnt) or (m and ln_state == 0 and p1):
                    if dma and cnt:
                        dma.pop(0)()
                        cnt -= 1
                    for _ in range(5):
                        if m and ln_state == 0 and p1:
                            p1.pop(0)()
                            m -= 1
                if ln_state == 1 and n == 3:
                    for f in p2:
                        f()
                    ln_state = 2
                    xn_st = st
            assert not dma and not nxt
            if st == 1 and "noln" in self.opts:
                self.nonce_issue()
            if st == 5:
                assert ln_state == 2
                mt_addr()
            if st == 6:
                epi_addr()
            if st == 7:
                if "noln" in self.opts:
                    k.wait_vm("nonce")
                    self.nonce_check()
                for f in mt_loads("mt"):
                    f()
            if st == 9:
                self.xf_poll_addr(9)
            if st == 10:
                prep1()
        self.ts(2)
        prep2()
        l1 = k.newlabel("akh1")
        l2 = k.newlabel("aend")
        k(f"s_lshr_b32 s57, {sr(S_W)}, 1")
        k("s_cmp_eq_u32 s57, 0")
        k(f"s_cbranch_scc0 {l1}")
        saved = (list(k.vm), list(k.lg))
        RD = 64
        for kh in range(2):
            if kh == 1:
                k.label(l1)
                k.vm, k.lg = list(saved[0]), list(saved[1])
            send = 8 if kh == 0 else 0
            keep = 0 if kh == 0 else 8
            prep3()
            for j in range(3):
                for q in range(2):
                    k.ds(f"ds_write_b128 {vr(XA)}, {vr(ACC+16*j+send+4*q,4)} offset:{(j*2+q)*1024}", "xw")
            self.poll_issue(12, 9, "0xffff", "poll")
            k.wait_lg("xw")
            k("s_barrier")
            for j in range(3):
                for q in range(2):
                    k.ds(f"ds_read_b128 {vr(RD+8*j+4*q,4)}, {vr(XR)} offset:{(j*2+q)*1024}", ("e", j))
            U = 124
            for j in range(3):
                V = RD + 8 * j
                k.wait_lg(("e", j))
                for e in range(4):
                    k(f"v_pk_add_f32 {vr(V+2*e,2)}, {vr(ACC+16*j+keep+2*e,2)}, {vr(V+2*e,2)}")
                for b_ in range(2):
                    u = U + 4 * j + 2 * b_
                    t_ = TK + 16 * b_
                    k(f"v_pk_mul_f32 {vr(u,2)}, {vr(V,2)}, {vr(t_,2)}")
                    for e in range(1, 4):
                        k(f"v_pk_fma_f32 {vr(u,2)}, {vr(V+2*e,2)}, {vr(t_+2*e,2)}, {vr(u,2)}")
            for j in range(3):
                for b_ in range(2):
                    u = U + 4 * j + 2 * b_
                    k(f"v_add_f32 {vr(u)}, {vr(u)}, {vr(u+1)}")
            for j in range(3):
                k(f"v_permlane32_swap_b32 {vr(U+4*j)}, {vr(U+4*j+2)}")
            for j in range(3):
                k(f"v_add_f32 {vr(U+4*j)}, {vr(U+4*j)}, {vr(U+4*j+2)}")
            if mat == 0:
                for j in range(3):
                    k(f"v_mul_f32 {vr(U+4*j)}, {vr(U+4*j)}, {vr(GH+j)}")
            for j in range(3):
                k.ds(f"ds_write_b32 {vr(UW)}, {vr(U+4*j)} offset:{j*256}", "uw")
            for j in range(3):
                V = RD + 8 * j
                for b_ in range(2):
                    f_ = FF + 24 * b_ + 8 * j if mat == 0 else TK + 16 * b_ + 8
                    X = 16 + 24 * b_ + 8 * j
                    for e in range(4):
                        k(f"v_pk_mul_f32 {vr(X+2*e,2)}, {vr(V+2*e,2)}, {vr(f_+2*e,2)}")
                    for e in range(4):
                        k(f"v_cvt_pk_bf16_f32 {vr(X+e)}, {vr(X+2*e)}, {vr(X+2*e+1)}")
                    if b_ == 0:
                        k.vmem(f"buffer_store_dwordx4 {vr(X,4)}, {vr(V_L16)}, {sr(SWS,4)}, {sr(S_OB)} offen "
                               f"offset:{j*1024} sc1", "w")
                    else:
                        if j == 0:
                            k(f"s_add_u32 s57, {sr(S_OB)}, {WB_STRIDE}")
                        k.vmem(f"buffer_store_dwordx4 {vr(X,4)}, {vr(V_L16)}, {sr(SWS,4)}, s57 offen "
                               f"offset:{j*1024} sc1", "w")
            k.wait_lg("uw")
            k("s_barrier")
            for sw in range(4):
                k.ds(f"ds_read_b32 {vr(U+sw)}, {vr(UW+1)} offset:{sw*768}", "ur")
            k.wait_lg("ur")
            k(f"v_add_f32 {vr(U)}, {vr(U)}, {vr(U+1)}")
            k(f"v_add_f32 {vr(U+2)}, {vr(U+2)}, {vr(U+3)}")
            k(f"v_add_f32 {vr(U)}, {vr(U)}, {vr(U+2)}")
            k.vmem(f"buffer_store_dword {vr(U)}, {vr(UW+2)}, {sr(SWS,4)}, {sr(S_OA)} offen sc1", "w")
            if kh == 0:
                k(f"s_branch {l2}")
        k.label(l2)
        self.ts(3)

    def phase_a_gemv(self):
        k = self.k
        S_G, S_CG, S_KP, S_O = 64, 65, 66, 67
        k(f"s_lshl_b32 {sr(S_G)}, {sr(S_XCD)}, 3")
        k(f"s_add_u32 {sr(S_G)}, {sr(S_G)}, {sr(S_IDX)}")
        k(f"s_sub_u32 {sr(S_G)}, {sr(S_G)}, 24")
        k(f"s_lshr_b32 {sr(S_CG)}, {sr(S_G)}, 1")
        k(f"s_and_b32 {sr(S_KP)}, {sr(S_G)}, 1")
        k(f"s_sub_u32 s57, {sr(S_G)}, 24")
        k(f"s_cmp_ge_u32 {sr(S_G)}, 48")
        k(f"s_cselect_b32 {sr(S_CG)}, s57, {sr(S_CG)}")
        k(f"s_cselect_b32 {sr(S_KP)}, 0, {sr(S_KP)}")
        k(f"s_cmp_ge_u32 {sr(S_G)}, 60")
        k(f"s_cselect_b32 {sr(S_CG)}, 0, {sr(S_CG)}")
        VT = 5
        k(f"s_lshl_b32 s57, {sr(S_W)}, 6")
        k(f"v_add_u32 {vr(VT)}, s57, {vr(V_LANE)}")
        VC = 6
        k(f"v_lshlrev_b32 v12, 1, {vr(VT)}")
        for b in range(2):
            for i in range(3):
                k.vmem(f"buffer_load_ushort {vr(VC+b*3+i)}, v12, {sr(SC,4)}, 0 offen offset:{b*1536+i*512}", "c")
        VW = 160
        k(f"v_lshrrev_b32 v13, 3, {vr(V_LANE)}")
        k(f"s_mul_i32 s57, {sr(S_W)}, 96")
        k("v_add_u32 v13, s57, v13")
        k("v_mul_u32_u24 v14, 9216, v13")
        k(f"v_and_b32 v15, 7, {vr(V_LANE)}")
        k("v_lshl_add_u32 v14, v15, 4, v14")

        def w_load_ops(second=False):
            base = VW + 48 if second else VW

            def op(i):
                def f():
                    if i == 0:
                        if second:
                            k(f"s_mov_b32 {sr(S_O)}, {384*9216}")
                        else:
                            k(f"s_mul_i32 {sr(S_O)}, {sr(S_KP)}, {384*9216}")
                        k(f"s_lshl_b32 s57, {sr(S_CG)}, 7")
                        k(f"s_add_u32 {sr(S_O)}, {sr(S_O)}, s57")
                    ins = f"buffer_load_dwordx4 {vr(base+4*i,4)}, v14, {sr(SWM,4)}, {sr(S_O)} offen nt"
                    if second:
                        k(ins)
                    else:
                        k.vmem(ins, ("w", i))
                    if i < 11:
                        k(f"s_add_u32 {sr(S_O)}, {sr(S_O)}, {8*9216}")
                return f
            return [op(i) for i in range(12)]

        def w2_loads():
            k(f"s_sub_u32 s58, {sr(S_G)}, 48")
            k("s_cmp_lt_u32 s58, 12")
            k("s_cselect_b64 exec, -1, 0")
            for f in w_load_ops(True):
                f()
            k("s_mov_b64 exec, -1")
        for f in w_load_ops():
            f()
        self.roles()
        if "tsA" in self.opts:
            self.ts(8)
        k.wait_vm("c")
        if "tsA" in self.opts:
            self.ts(9)
        k(f"s_mov_b32 s57, {f32hex(-1.4426950408889634)}")
        for n in range(6):
            k(f"v_lshlrev_b32 {vr(VC+n)}, 16, {vr(VC+n)}")
        for n in range(6):
            k(f"v_mul_f32 {vr(16+n)}, s57, {vr(VC+n)}")
        for n in range(6):
            k(f"v_exp_f32 {vr(16+n)}, {vr(16+n)}")
        for n in range(6):
            k(f"v_add_f32 {vr(16+n)}, 1.0, {vr(16+n)}")
        for n in range(6):
            k(f"v_rcp_f32 {vr(16+n)}, {vr(16+n)}")
        for i in range(3):
            k(f"v_mul_f32 {vr(22+2*i)}, {vr(VC+i)}, {vr(16+i)}")
            k(f"v_mul_f32 {vr(23+2*i)}, {vr(VC+3+i)}, {vr(16+3+i)}")
        k(f"v_lshlrev_b32 v12, 3, {vr(VT)}")
        for i in range(3):
            k.ds(f"ds_write_b64 v12, {vr(22+2*i,2)} offset:{i*2048}")
        k.wait_lg_all()
        k("s_barrier")
        self.ts(24)
        self.nonce_issue()
        self.x_loads()
        self.code_prefetch()

        def gemv_pass(first):
            VWp = VW if first else VW + 48
            wt = "w" if first else "w2"
            RED = 8192 if first else 12288
            AC = 40
            SV = 56
            TM = 32
            k(f"s_mul_i32 s57, {sr(S_KP)}, {384*8}")
            k("v_lshl_add_u32 v12, v13, 3, s57")
            for i in range(2):
                k.ds(f"ds_read_b64 {vr(SV+2*i,2)}, v12 offset:{i*64}", ("s", i))
            for i in range(12):
                k.wait_vm((wt, i))
                if "tsA" in self.opts and first and i in (0, 11):
                    self.ts(10 if i == 0 else 11)
                for d in range(4):
                    k(f"v_lshlrev_b32 {vr(TM+2*d)}, 16, {vr(VWp+4*i+d)}")
                    k(f"v_and_b32 {vr(TM+2*d+1)}, {sr(S_MASK)}, {vr(VWp+4*i+d)}")
                k.wait_lg(("s", i))
                s = vr(SV + 2 * (i % 2), 2)
                for c in range(8):
                    src = vr(TM + (c & ~1), 2)
                    sel = "op_sel_hi:[0,1,1]" if c % 2 == 0 else "op_sel:[1,0,0] op_sel_hi:[1,1,1]"
                    if i == 0:
                        sel = "op_sel_hi:[0,1]" if c % 2 == 0 else "op_sel:[1,0] op_sel_hi:[1,1]"
                        k(f"v_pk_mul_f32 {vr(AC+2*c,2)}, {src}, {s} {sel}")
                    else:
                        k(f"v_pk_fma_f32 {vr(AC+2*c,2)}, {src}, {s}, {vr(AC+2*c,2)} {sel}")
                if i + 2 < 12:
                    k.ds(f"ds_read_b64 {vr(SV+2*(i%2),2)}, v12 offset:{(i+2)*64}", ("s", i + 2))
            if first:
                self.ts(25)
                k.wait_vm("x")
                self.nonce_check()
                w2_loads()
            else:
                k.wait_vm("xn")
                self.xf_offset("s57")
                self.publish("s57")
            for i in range(8):
                k(f"v_permlane32_swap_b32 {vr(AC+i)}, {vr(AC+i+8)}")
            for i in range(8):
                k(f"v_add_f32 {vr(AC+i)}, {vr(AC+i)}, {vr(AC+i+8)}")
            for i in range(4):
                k(f"v_permlane16_swap_b32 {vr(AC+i)}, {vr(AC+i+4)}")
            for i in range(4):
                k(f"v_add_f32 {vr(AC+i)}, {vr(AC+i)}, {vr(AC+i+4)}")
            for i in range(4):
                k(f"v_add_f32_dpp {vr(AC+i)}, {vr(AC+i)}, {vr(AC+i)} row_ror:8 row_mask:0xf bank_mask:0xf")
            k(f"s_lshl_b32 s57, {sr(S_W)}, 10")
            k(f"v_add_u32 v12, s57, {vr(V_L16)}")
            k.ds(f"ds_write_b128 v12, {vr(AC,4)} offset:{RED}")
            k.wait_lg_all()
            k("s_barrier")
            skip = k.newlabel("red")
            k(f"s_cmp_eq_u32 {sr(S_W)}, 0")
            k(f"s_cbranch_scc0 {skip}")
            sv = list(k.vm)
            for w in range(1, 4):
                k.ds(f"ds_read_b128 {vr(44+4*(w-1),4)}, {vr(V_L16)} offset:{RED+w*1024}")
            k.wait_lg_all()
            for e in range(4):
                k(f"v_add_f32 {vr(44+e)}, {vr(44+e)}, {vr(48+e)}")
                k(f"v_add_f32 {vr(AC+e)}, {vr(AC+e)}, {vr(52+e)}")
            for e in range(4):
                k(f"v_add_f32 {vr(AC+e)}, {vr(AC+e)}, {vr(44+e)}")
            k(f"v_and_b32 v32, 8, {vr(V_LANE)}")
            k("v_cmp_eq_u32 vcc, 0, v32")
            k(f"v_cndmask_b32 v36, {vr(AC+2)}, {vr(AC)}, vcc")
            k(f"v_cndmask_b32 v37, {vr(AC+3)}, {vr(AC+1)}, vcc")
            k(f"v_lshrrev_b32 v35, 4, {vr(V_LANE)}")
            k("v_lshlrev_b32 v35, 1, v35")
            k("v_lshrrev_b32 v32, 3, v32")
            k("v_add_u32 v35, v35, v32")
            k("v_lshl_add_u32 v35, v15, 3, v35")
            if first:
                gate, nost = k.newlabel("gate"), k.newlabel("nost")
                k(f"s_cmp_ge_u32 {sr(S_G)}, 60")
                k(f"s_cbranch_scc1 {nost}")
                k(f"s_cmp_ge_u32 {sr(S_G)}, 48")
                k(f"s_cbranch_scc1 {gate}")
                k(f"v_mov_b32 v38, {vr(V_N)}")
                k(f"v_mov_b32 v39, {vr(V_N+1)}")
                k("v_lshlrev_b32 v35, 4, v35")
                k(f"s_mul_i32 s57, {sr(S_KP)}, {1536*16}")
                k(f"s_lshl_b32 s58, {sr(S_CG)}, 10")
                k("s_add_u32 s57, s57, s58")
                k(f"s_add_u32 s57, s57, {MODT_OFF}")
                k(f"buffer_store_dwordx4 v[36:39], v35, {sr(SWS,4)}, s57 offen sc1")
                k(f"s_branch {nost}")
                k.label(gate)
            k("v_lshlrev_b32 v35, 2, v35")
            k(f"s_lshl_b32 s58, {sr(S_CG)}, 8")
            k(f"s_add_u32 s57, s58, {MOD_OFF + (0 if first else 2*2304*4)}")
            k(f"buffer_store_dword v36, v35, {sr(SWS,4)}, s57 offen sc1")
            k(f"s_add_u32 s57, s57, {2304*4}")
            k(f"buffer_store_dword v37, v35, {sr(SWS,4)}, s57 offen sc1")
            if first:
                k.label(nost)
            k.label(skip)
            k.vm = sv
        gemv_pass(True)
        self.ts(2)
        self.ln8()
        self.ts(1)
        done, nog = k.newlabel("gvdone"), k.newlabel("nogate")
        k(f"s_sub_u32 s58, {sr(S_G)}, 48")
        k("s_cmp_lt_u32 s58, 12")
        k(f"s_cbranch_scc0 {nog}")
        sv2 = list(k.vm)
        k(f"s_mov_b32 {sr(S_KP)}, 1")
        k("s_waitcnt vmcnt(3)")
        gemv_pass(False)
        k.wait_vm_all()
        k(f"s_cmp_eq_u32 {sr(S_W)}, 0")
        k(f"s_cbranch_scc0 {done}")
        k(f"s_lshl_b32 s57, {sr(S_G)}, 3")
        k(f"s_add_u32 s57, s57, {MF_OFF}")
        self.publish("s57")
        k(f"s_branch {done}")
        k.label(nog)
        k.vm = sv2
        k.wait_vm_all()
        self.xf_offset("s57")
        self.publish("s57")
        k.label(done)
        k.vm = []
        k(f"s_mov_b32 {sr(S_PEND)}, 0")
        self.xf_poll_addr(9)
        self.poll_issue(12, 9, "0xffff", "poll")
        k.wait_vm_all()
        self.ts(3)

    HB = 64

    def phase_b_pre(self):
        k = self.k
        HB = self.HB
        S_HB, S_WB, S_M0, S_O = 64, 65, 66, 67
        ok = k.newlabel("xfok")
        k("s_waitcnt vmcnt(7)")
        self.poll_eval(12, "0xffff")
        k(f"s_cbranch_vccz {ok}")
        k("s_waitcnt vmcnt(0)")
        np_ = k.newlabel("np")
        k(f"s_cmp_eq_u32 {sr(S_PEND)}, 0")
        k(f"s_cbranch_scc1 {np_}")
        self.publish(sr(S_PEND))
        k(f"s_mov_b32 {sr(S_PEND)}, 0")
        k.label(np_)
        self.spin(12, 9, "0xffff")
        k.label(ok)
        k.vm = ["wst"] * 7
        self.ts(4)
        k(f"s_lshl_b32 s57, {sr(S_R)}, 2")
        k(f"s_add_u32 s57, s57, {sr(S_W)}")
        k(f"s_mul_i32 {sr(S_HB)}, s57, 49152")
        k(f"s_add_u32 {sr(S_HB)}, {sr(S_HB)}, {XN_OFF}")

        def xn_load(f):
            if f % 4 == 0 and f:
                k(f"s_add_u32 {sr(S_HB)}, {sr(S_HB)}, 4096")
            k.vmem(f"buffer_load_dwordx4 {vr(HB+4*f,4)}, {vr(V_L16)}, {sr(SWS,4)}, {sr(S_HB)} offen "
                   f"offset:{(f%4)*1024} sc1", ("h", f // 4))
        N1, N2 = self.NX1, self.NX2
        for f in range(N1):
            xn_load(f)
        k(f"s_lshr_b32 s57, {sr(S_R)}, 3")
        k("s_lshl_b32 s57, s57, 4")
        k(f"s_add_u32 s57, s57, {sr(S_CB)}")
        k(f"s_mul_i32 {sr(S_WB)}, s57, {48*3072}")
        k(f"s_mul_i32 {sr(S_M0)}, {sr(S_W)}, 3072")
        k(f"s_add_u32 {sr(S_WB)}, {sr(S_WB)}, {sr(S_M0)}")
        if WTS_OFF:
            k(f"s_add_u32 {sr(S_WB)}, {sr(S_WB)}, {WTS_OFF}")
        k(f"s_lshl_b32 s57, {sr(S_CB)}, 9")
        k(f"s_add_u32 s57, s57, {WF_OFF}")
        k(f"v_lshlrev_b32 v9, 3, {vr(V_LANE)}")
        k("v_add_u32 v9, s57, v9")
        k.wait_vm("wst")
        np2 = k.newlabel("np")
        k(f"s_cmp_eq_u32 {sr(S_PEND)}, 0")
        k(f"s_cbranch_scc1 {np2}")
        k("s_mov_b64 exec, 1")
        k(f"buffer_store_dwordx2 {vr(V_N,2)}, off, {sr(SWS,4)}, {sr(S_PEND)} sc1")
        k("s_mov_b64 exec, -1")
        k.label(np2)
        self.ts(5)
        for f in range(N1, N2):
            xn_load(f)
        wmask = "s_mov_b32 exec_lo, 0x0fff0fff\ns_mov_b32 exec_hi, 0x0fff0fff"
        k(wmask)
        k.vmem(f"buffer_load_dwordx2 v[12:13], v9, {sr(SWS,4)}, 0 offen sc1", "wpoll")
        k("s_mov_b64 exec, -1")
        for f in range(N2, 48):
            xn_load(f)
        k.wait_vm("wpoll")
        lw = k.newlabel("wok")
        k(wmask)
        k(f"v_cmp_ne_u64 vcc, v[12:13], {vr(V_N,2)}")
        k("s_mov_b64 exec, -1")
        k(f"s_cbranch_vccz {lw}")
        sv = list(k.vm)
        self.spin_at(12, 9, wmask)
        k.label(lw)
        k.vm = sv
        self.ts(6)
        for c in range(self.NWPRE):
            for f in self.w_issue_ops(c):
                f()
        k(f"s_mul_i32 s57, {sr(S_CB)}, 12")
        k(f"s_mul_i32 s58, {sr(S_W)}, 3")
        k("s_add_u32 s57, s57, s58")
        k("s_mul_i32 s57, s57, 768")
        k(f"s_lshr_b32 s58, {sr(S_R)}, 3")
        k("s_mul_i32 s58, s58, 384")
        k("s_add_u32 s57, s57, s58")
        k(f"s_add_u32 s57, s57, {UP_OFF}")
        k(f"v_lshlrev_b32 v7, 3, {vr(V_LANE)}")
        k("s_bfm_b64 exec, 48, 0")
        for i in range(3):
            k.vmem(f"buffer_load_dwordx2 {ar(40+2*i,2)}, v7, {sr(SWS,4)}, s57 offen offset:{i*768} sc1", "u")
        k("s_mov_b64 exec, -1")
        for i in range(4):
            k(f"v_mov_b32 {vr(8+i)}, 0x3f803f80")
        self.ts(7)

    NX1, NX2 = 20, 36
    NWPRE = 6

    def w_issue_ops(self, c):
        k = self.k
        S_WB, S_M0, S_O = 65, 66, 67
        ops = []

        def f(i):
            def g():
                if i == 0:
                    k(f"s_add_u32 {sr(S_O)}, {sr(S_WB)}, {c*12288}")
                    k(f"s_add_u32 m0, {sr(S_M0)}, {c*12288}")
                k.vmem(f"buffer_load_dwordx4 {vr(V_L16)}, {sr(SWS,4)}, {sr(S_O)} offen offset:{i*1024} sc1 lds",
                       ("W", c))
            return g
        return [f(i) for i in range(3)]

    def phase_b(self):
        k = self.k
        HB = self.HB
        RW = 4
        k(f"v_mov_b32 {vr(RW)}, {vr(V_L16)}")
        k(f"v_add_u32 {vr(RW+1)}, 0x10000, {vr(V_L16)}")
        k(f"v_add_u32 {vr(RW+2)}, 0x20000, {vr(V_L16)}")
        ACC = 16
        NR, DIST = 8, 5
        lv = k.newlabel("bV")
        le = k.newlabel("bE")
        k(f"s_cmp_lt_u32 {sr(S_CB)}, 8")
        k(f"s_cbranch_scc0 {lv}")
        saved = (list(k.vm), list(k.lg))
        for part in range(2):
            if part == 1:
                k.label(lv)
                k.vm, k.lg = list(saved[0]), list(saved[1])

            def read(f):
                off = (f % 64) * 1024 if f < 144 else UF_LDS - 0x20000 + (f - 144) * 1024
                k.ds(f"ds_read_b128 {ar(4*(f%NR),4)}, {vr(RW+f//64)} offset:{off}", ("f", f))

            def bias1():
                ops = [lambda: k.wait_vm("u")]

                def e(line):
                    ops.append(lambda: k(line))
                for h_ in range(2):
                    e(f"v_accvgpr_read_b32 {vr(12+h_)}, {ar(40+h_)}")
                    e(f"v_accvgpr_read_b32 {vr(14+h_)}, {ar(42+h_)}")
                e("v_pk_add_f32 v[12:13], v[12:13], v[14:15]")
                for h_ in range(2):
                    e(f"v_accvgpr_read_b32 {vr(14+h_)}, {ar(44+h_)}")
                e("v_pk_add_f32 v[12:13], v[12:13], v[14:15]")
                e(f"s_mul_i32 s57, {sr(S_W)}, 384")
                e(f"s_add_u32 s57, s57, {UL_LDS}")
                e("v_add_u32 v7, s57, v7")

                def wr():
                    k("s_bfm_b64 exec, 48, 0")
                    k.ds("ds_write_b64 v7, v[12:13]", "ul")
                    k("s_mov_b64 exec, -1")
                ops.append(wr)
                return ops

            def bias2():
                ops = []

                def e(line):
                    ops.append(lambda: k(line))
                e(f"v_and_b32 v7, 31, {vr(V_LANE)}")
                e(f"s_lshl_b32 s57, {sr(S_W)}, 7")
                e(f"s_add_u32 s57, s57, {UL_LDS}")
                e("v_lshl_add_u32 v7, v7, 2, s57")
                for sw in range(4):
                    ops.append(lambda sw=sw: k.ds(f"ds_read_b32 {vr(12+sw)}, v7 offset:{sw*384}", "ur"))
                ops.append(lambda: k.wait_lg("ur"))
                e("v_add_f32 v12, v12, v13")
                e("v_add_f32 v14, v14, v15")
                e("v_add_f32 v12, v12, v14")
                e("v_cvt_pk_bf16_f32 v13, v12, v12")
                e("v_lshlrev_b32 v13, 16, v13")
                e("v_sub_f32 v14, v12, v13")
                e("v_cvt_pk_bf16_f32 v12, v13, v14")
                e(f"v_cmp_gt_u32 vcc, 32, {vr(V_LANE)}")
                e("v_cndmask_b32 v12, 0, v12, vcc")
                e("v_mov_b32 v13, 0")
                e("v_mov_b32 v14, 0")
                e("v_mov_b32 v15, 0")
                e(f"s_lshl_b32 s57, {sr(S_W)}, 10")
                e(f"s_add_u32 s57, s57, {UF_LDS}")
                e(f"v_add_u32 v7, s57, {vr(V_L16)}")
                ops.append(lambda: k.ds("ds_write_b128 v7, v[12:15]", "uf"))
                return ops
            k.wait_vm(("W", 0))
            k("s_barrier")
            for f in range(DIST):
                read(f)
            def xres():
                ops = []

                def e(line):
                    ops.append(lambda: k(line))
                e(f"s_lshr_b32 s56, {sr(S_XCD)}, 2")
                e("s_lshl_b32 s56, s56, 4")
                e(f"s_and_b32 s57, {sr(S_XCD)}, 1")
                e("s_lshl_b32 s57, s57, 3")
                e("s_add_u32 s56, s56, s57")
                e(f"s_and_b32 s57, {sr(S_IDX)}, 7")
                e("s_add_u32 s56, s56, s57")
                e(f"s_mul_i32 s56, s56, {64*1536}")
                e(f"s_lshr_b32 s57, {sr(S_XCD)}, 1")
                e("s_and_b32 s57, s57, 1")
                e("s_lshl_b32 s57, s57, 2")
                e(f"s_lshr_b32 s58, {sr(S_IDX)}, 3")
                e("s_add_u32 s57, s57, s58")
                e("s_mul_i32 s57, s57, 192")
                e("s_add_u32 s56, s56, s57")
                e(f"v_lshrrev_b32 v14, 3, {vr(V_LANE)}")
                e(f"s_lshl_b32 s57, {sr(S_W)}, 3")
                e("v_add_u32 v14, s57, v14")
                e("v_mul_u32_u24 v14, 1536, v14")
                e(f"v_and_b32 v15, 7, {vr(V_LANE)}")
                e("v_lshl_add_u32 v14, v15, 3, v14")
                for sub in range(2):
                    if sub:
                        e(f"s_add_u32 s56, s56, {32*1536}")
                    for j in range(3):
                        ops.append(lambda sub=sub, j=j: k.vmem(
                            f"buffer_load_dwordx2 {ar(self.A_X+2*(3*sub+j),2)}, v14, {sr(SX,4)}, s56 offen "
                            f"offset:{j*64}", "x"))
                return ops
            dma = []
            fill = []
            for f in range(147):
                c, m = f // 12, f % 12
                if m == 0 and c + self.NWPRE < 12:
                    dma = self.w_issue_ops(c + self.NWPRE)
                if f == 60:
                    fill = bias1()
                if f == 84:
                    assert not fill
                    fill = bias2()
                if f == 100:
                    assert not fill
                    fill = xres()
                nf = f + DIST
                if nf < 147:
                    if nf % 12 == 0:
                        if nf < 144:
                            k.wait_vm(("W", nf // 12))
                        if nf == 84:
                            assert not fill
                            k.wait_lg("ul")
                        if nf == 120:
                            k.wait_lg("uf")
                        if nf < 144:
                            k("s_barrier")
                    read(nf)
                k.wait_lg(("f", f))
                ks, j = f // 3, f % 3
                cc = "0" if ks == 0 else vr(ACC + 16 * j, 16)
                hx = vr(HB + 4 * ks, 4) if ks < 48 else vr(8, 4)
                if part == 0:
                    k(f"v_mfma_f32_32x32x16_bf16 {vr(ACC+16*j,16)}, {ar(4*(f%NR),4)}, {hx}, {cc}")
                else:
                    k(f"v_mfma_f32_32x32x16_bf16 {vr(ACC+16*j,16)}, {hx}, {ar(4*(f%NR),4)}, {cc}")
                if m in (1, 5, 9) and dma:
                    dma.pop(0)()
                for _ in range(2):
                    if fill:
                        fill.pop(0)()
            k("s_barrier")
            self.ts(8)
            if part == 0:
                k(f"s_lshl_b32 s57, {sr(S_R)}, 2")
                k(f"s_add_u32 s57, s57, {sr(S_W)}")
                k("s_mul_i32 s56, s57, 48")
                k(f"s_mul_i32 s58, {sr(S_CB)}, 6")
                k("s_add_u32 s56, s56, s58")
                k("s_lshl_b32 s56, s56, 10")
                k(f"s_add_u32 s56, s56, {T_OFF}")
                k("s_lshl_b32 s57, s57, 3")
                k(f"s_add_u32 s57, s57, {sr(S_CB)}")
                k("s_lshl_b32 s57, s57, 3")
                k(f"s_add_u32 {sr(S_PEND)}, s57, {TF_OFF}")
            else:
                k(f"s_lshr_b32 s58, {sr(S_R)}, 3")
                k("s_mul_i32 s56, s58, 24")
                k(f"s_sub_u32 s60, {sr(S_CB)}, 8")
                k("s_mul_i32 s61, s60, 3")
                k("s_add_u32 s56, s56, s61")
                k("s_lshl_b32 s56, s56, 6")
                k(f"s_and_b32 s61, {sr(S_R)}, 7")
                k("s_lshl_b32 s62, s61, 3")
                k("s_add_u32 s56, s56, s62")
                k(f"s_lshl_b32 s62, {sr(S_W)}, 1")
                k("s_add_u32 s56, s56, s62")
                k("s_lshl_b32 s56, s56, 10")
                k(f"s_add_u32 s56, s56, {VT_OFF}")
                k("s_lshl_b32 s57, s58, 3")
                k("s_add_u32 s57, s57, s60")
                k("s_lshl_b32 s57, s57, 3")
                k("s_add_u32 s57, s57, s61")
                k("s_lshl_b32 s57, s57, 2")
                k(f"s_add_u32 s57, s57, {sr(S_W)}")
                k("s_lshl_b32 s57, s57, 3")
                k(f"s_add_u32 {sr(S_PEND)}, s57, {VF_OFF}")
            for j in range(3):
                for s in range(2):
                    d = ACC + 16 * j + 8 * s
                    for e in range(4):
                        k(f"v_cvt_pk_bf16_f32 {vr(d+e)}, {vr(ACC+16*j+8*s+2*e)}, {vr(ACC+16*j+8*s+2*e+1)}")
                    if part == 0:
                        n = 2 * j + s
                        if n == 4:
                            k("s_add_u32 s56, s56, 4096")
                        k.vmem(f"buffer_store_dwordx4 {vr(d,4)}, {vr(V_L16)}, {sr(SWS,4)}, s56 offen "
                               f"offset:{(n%4)*1024} sc1", "bst")
                    else:
                        k.vmem(f"buffer_store_dwordx4 {vr(d,4)}, {vr(V_L16)}, {sr(SWS,4)}, s56 offen "
                               f"offset:{s*1024} sc1", "bst")
                if part == 1 and j < 2:
                    k("s_add_u32 s56, s56, 65536")
            if part == 0:
                k(f"s_branch {le}")
        k.label(le)
        self.ts(9)

    S_B, S_QB, S_DB, S_VO, S_PB, S_XO = 64, 65, 66, 67, 68, 69
    V_GO = 10
    XM_LDS = 98304
    ML_LDS = 98304 + 1024
    A_RING, A_X, A_G = 192, 220, 232

    def spin_at(self, vdst, voff, mask, off=0):
        k = self.k
        loop = k.newlabel("spin")
        done = k.newlabel("spun")
        o = f" offset:{off}" if off else ""
        k(f"s_mov_b32 {sr(S_SPIN)}, 0")
        k(mask)
        k.label(loop)
        k(f"buffer_load_dwordx2 {vr(vdst,2)}, {vr(voff)}, {sr(SWS,4)}, 0 offen{o} sc1")
        k("s_waitcnt vmcnt(0)")
        k(f"v_cmp_ne_u64 vcc, {vr(vdst,2)}, {vr(V_N,2)}")
        k(f"s_cbranch_vccz {done}")
        k(f"s_add_u32 {sr(S_SPIN)}, {sr(S_SPIN)}, 1")
        k(f"s_cmp_lt_u32 {sr(S_SPIN)}, {SPIN_MAX}")
        k(f"s_cbranch_scc1 {loop}")
        k.label(done)
        k("s_mov_b64 exec, -1")
        k.vm = []

    def phase_c(self):
        k = self.k
        HB = self.HB
        S_B, S_QB, S_DB, S_VO, S_PB, S_XO = self.S_B, self.S_QB, self.S_DB, self.S_VO, self.S_PB, self.S_XO
        S_TB, S_M0, S_O, S_R0 = 60, 61, 62, 63
        k(f"s_lshr_b32 {sr(S_B)}, {sr(S_XCD)}, 2")
        k(f"s_and_b32 s56, {sr(S_XCD)}, 1")
        k("s_lshl_b32 s56, s56, 3")
        k(f"s_and_b32 {sr(S_QB)}, {sr(S_IDX)}, 7")
        k(f"s_add_u32 {sr(S_QB)}, {sr(S_QB)}, s56")
        k(f"s_lshr_b32 s56, {sr(S_XCD)}, 1")
        k("s_and_b32 s56, s56, 1")
        k("s_lshl_b32 s56, s56, 2")
        k(f"s_lshr_b32 {sr(S_DB)}, {sr(S_IDX)}, 3")
        k(f"s_add_u32 {sr(S_DB)}, {sr(S_DB)}, s56")
        k(f"s_lshl_b32 {sr(S_R0)}, {sr(S_B)}, 5")
        k(f"s_lshl_b32 s56, {sr(S_CB)}, 1")
        k(f"s_add_u32 {sr(S_R0)}, {sr(S_R0)}, s56")
        k(f"s_mul_i32 {sr(S_TB)}, {sr(S_R0)}, 49152")
        k(f"s_lshl_b32 {sr(S_M0)}, {sr(S_W)}, 12")
        k(f"s_add_u32 {sr(S_TB)}, {sr(S_TB)}, {sr(S_M0)}")
        k(f"s_add_u32 {sr(S_TB)}, {sr(S_TB)}, {T_OFF}")
        k(f"s_lshl_b32 s56, {sr(S_R0)}, 6")
        k(f"s_add_u32 s56, s56, {TF_OFF}")
        k(f"s_lshl_b32 s57, {sr(S_B)}, 3")
        k(f"s_add_u32 s57, s57, {sr(S_DB)}")
        k("s_lshl_b32 s57, s57, 8")
        k(f"s_lshl_b32 s58, {sr(S_W)}, 6")
        k("s_add_u32 s57, s57, s58")
        k(f"s_add_u32 s57, s57, {VF_OFF - 128}")
        k(f"v_mov_b32 v9, {MF_OFF + 48*8 - 24*8}")
        k("v_mov_b32 v11, s57")
        k(f"v_cmp_gt_u32 vcc, 24, {vr(V_LANE)}")
        k("v_cndmask_b32 v9, v9, v11, vcc")
        k("v_mov_b32 v11, s56")
        k(f"v_cmp_gt_u32 vcc, 16, {vr(V_LANE)}")
        k("v_cndmask_b32 v9, v9, v11, vcc")
        k(f"v_lshl_add_u32 v9, {vr(V_LANE)}, 3, v9")
        k(f"s_lshl_b32 s56, {sr(S_R0)}, 6")
        k(f"s_and_b32 s57, {sr(S_R)}, 7")
        k("s_lshl_b32 s58, s57, 3")
        k("s_add_u32 s56, s56, s58")
        k(f"s_lshl_b32 s58, {sr(S_W)}, 1")
        k("s_add_u32 s56, s56, s58")
        k("s_lshl_b32 s56, s56, 10")
        k(f"s_add_u32 {sr(S_PB)}, s56, {P_OFF}")
        k(f"s_lshl_b32 s56, {sr(S_R0)}, 3")
        k("s_add_u32 s56, s56, s57")
        k("s_lshl_b32 s56, s56, 2")
        k(f"s_add_u32 s56, s56, {sr(S_W)}")
        k("s_lshl_b32 s94, s56, 8")
        k(f"s_add_u32 s94, s94, {ST_OFF}")
        k("s_lshl_b32 s95, s56, 3")
        k(f"s_add_u32 s95, s95, {PF_OFF}")
        k(f"s_mul_i32 s56, {sr(S_B)}, 24")
        k(f"s_mul_i32 s57, {sr(S_DB)}, 3")
        k("s_add_u32 s56, s56, s57")
        k("s_lshl_b32 s56, s56, 6")
        k(f"s_lshl_b32 s57, {sr(S_W)}, 4")
        k("s_add_u32 s56, s56, s57")
        k("s_lshl_b32 s56, s56, 10")
        k(f"s_add_u32 {sr(S_VO)}, s56, {VT_OFF}")
        k(f"s_lshl_b32 s56, {sr(S_B)}, 4")
        k(f"s_add_u32 s56, s56, {sr(S_QB)}")
        k(f"s_mul_i32 s56, s56, {64*1536}")
        k(f"s_mul_i32 s57, {sr(S_DB)}, 192")
        k(f"s_add_u32 {sr(S_XO)}, s56, s57")
        GO = self.V_GO
        k(f"v_lshrrev_b32 v14, 3, {vr(V_LANE)}")
        k(f"s_lshl_b32 s56, {sr(S_W)}, 3")
        k("v_add_u32 v14, s56, v14")
        k(f"v_mul_u32_u24 {vr(GO)}, 1536, v14")
        k(f"v_and_b32 v15, 7, {vr(V_LANE)}")
        k(f"v_lshl_add_u32 {vr(GO)}, v15, 3, {vr(GO)}")
        k("v_lshlrev_b32 v15, 4, v15")
        RW = 4
        k(f"v_mov_b32 {vr(RW)}, {vr(V_L16)}")
        k(f"v_add_u32 {vr(RW+1)}, 0x10000, {vr(V_L16)}")
        k(f"v_and_b32 v8, 31, {vr(V_LANE)}")
        k("v_lshlrev_b32 v7, 4, v8")
        k(f"v_add_u32 v7, {self.XM_LDS}, v7")
        k(f"s_lshl_b32 s56, {sr(S_W)}, 2")
        k("v_add_u32 v6, s56, v7")
        k("v_lshlrev_b32 v8, 3, v8")
        k.wait_vm_all()
        self.publish(sr(S_PEND))
        self.ts(10)

        self.spin_at(12, 9, "s_bfm_b64 exec, 36, 0")
        self.ts(11)
        def t_ops(c):
            def g(i):
                def f():
                    if i == 0:
                        k(f"s_add_u32 {sr(S_O)}, {sr(S_TB)}, {c*16384}")
                        k(f"s_add_u32 m0, {sr(S_M0)}, {c*16384}")
                    k.vmem(f"buffer_load_dwordx4 {vr(V_L16)}, {sr(SWS,4)}, {sr(S_O)} offen offset:{i*1024} sc1 lds",
                           ("T", c))
                return f
            return [g(i) for i in range(4)]
        tlate = []
        for c in range(6):
            if c < self.ntpre:
                for f in t_ops(c):
                    f()
            else:
                tlate += t_ops(c)
        self.ts(42)
        pre = []

        def xl(sub, j):
            def f():
                if j == 0:
                    k(f"s_add_u32 s56, {sr(S_XO)}, {sub*32*1536}")
                k.vmem(f"buffer_load_dwordx2 {ar(self.A_X+2*(3*sub+j),2)}, {vr(GO)}, {sr(SX,4)}, s56 offen "
                       f"offset:{j*64}", "x")
            return f

        def gl(kp, j):
            def f():
                if j == 0:
                    if kp == 0:
                        k(f"s_mul_i32 s57, {sr(S_B)}, {2304*4}")
                        k(f"s_mul_i32 s58, {sr(S_DB)}, 384")
                        k("s_add_u32 s57, s57, s58")
                        k(f"s_add_u32 s57, s57, {MOD_OFF + 1536*4}")
                    else:
                        k(f"s_add_u32 s57, s57, {2*2304*4}")
                k.vmem(f"buffer_load_dwordx4 {ar(self.A_G+12*kp+4*j,4)}, v15, {sr(SWS,4)}, s57 offen "
                       f"offset:{j*128} sc1", "g")
            return f

        def vl(j, s):
            def f():
                if s % 4 == 0:
                    k(f"s_add_u32 s59, {sr(S_VO)}, {j*65536 + s*1024}")
                k.vmem(f"buffer_load_dwordx4 {ar((j*16+s)*4,4)}, {vr(V_L16)}, {sr(SWS,4)}, s59 offen "
                       f"offset:{(s%4)*1024} sc1", "V")
            return f
        for kp in range(2):
            pre += [gl(kp, j) for j in range(3)]
        vall = [vl(j, s) for j in range(3) for s in range(16)]
        pre += vall[:self.nvc]
        self.vrest = vall[self.nvc:]

        ACC = 16
        NR, DIST = 7, 5

        def read(f):
            k.ds(f"ds_read_b128 {ar(self.A_RING+4*(f%NR),4)}, {vr(RW+f//64)} offset:{(f%64)*1024}", ("f", f))

        def softmax_ops(sub):
            A = ACC + 16 * sub
            M, T2 = 48, 49
            ST_ = 50 + 2 * sub
            X = 56
            ops = []

            def e(line):
                ops.append(lambda: k(line))
            e(f"v_max3_f32 {vr(M)}, {vr(A)}, {vr(A+1)}, {vr(A+2)}")
            e(f"v_max3_f32 {vr(T2)}, {vr(A+3)}, {vr(A+4)}, {vr(A+5)}")
            for x in range(6, 14, 4):
                e(f"v_max3_f32 {vr(M)}, {vr(M)}, {vr(A+x)}, {vr(A+x+1)}")
                e(f"v_max3_f32 {vr(T2)}, {vr(T2)}, {vr(A+x+2)}, {vr(A+x+3)}")
            e(f"v_max3_f32 {vr(M)}, {vr(M)}, {vr(A+14)}, {vr(A+15)}")
            e(f"v_max_f32 {vr(M)}, {vr(M)}, {vr(T2)}")
            e(f"v_mov_b32 {vr(T2)}, {vr(M)}")
            e(f"v_permlane32_swap_b32 {vr(T2)}, {vr(M)}")
            e(f"v_max_f32 {vr(M)}, {vr(M)}, {vr(T2)}")
            ops.append(lambda: k.ds(f"ds_write_b32 v6, {vr(M)} offset:{sub*512}", ("mw", sub)))

            def bar():
                k.wait_lg(("mw", sub))
                k("s_barrier")
                k.ds(f"ds_read_b128 {vr(X,4)}, v7 offset:{sub*512}", ("mr", sub))
            ops.append(bar)
            nbar = len(ops)
            ops.append(lambda: k.wait_lg(("mr", sub)))
            e(f"v_max3_f32 {vr(ST_)}, {vr(X)}, {vr(X+1)}, {vr(X+2)}")
            e(f"v_max_f32 {vr(ST_)}, {vr(ST_)}, {vr(X+3)}")
            for x in range(16):
                e(f"v_sub_f32 {vr(A+x)}, {vr(A+x)}, {vr(ST_)}")
            for x in range(16):
                e(f"v_exp_f32 {vr(A+x)}, {vr(A+x)}")
            e(f"v_add_f32 {vr(M)}, {vr(A)}, {vr(A+1)}")
            e(f"v_add_f32 {vr(T2)}, {vr(A+2)}, {vr(A+3)}")
            for x in range(4, 16, 2):
                e(f"v_add_f32 {vr(M)}, {vr(M)}, {vr(A+x)}")
                e(f"v_add_f32 {vr(T2)}, {vr(T2)}, {vr(A+x+1)}")
            for s in range(2):
                d = A + 8 * s
                for x in range(4):
                    e(f"v_cvt_pk_bf16_f32 {vr(d+x)}, {vr(d+2*x)}, {vr(d+2*x+1)}")

                def st(s=s, d=d):
                    if s == 0:
                        k(f"s_add_u32 s58, {sr(S_PB)}, {sub*65536}")
                    k.vmem(f"buffer_store_dwordx4 {vr(d,4)}, {vr(V_L16)}, {sr(SWS,4)}, s58 offen "
                           f"offset:{s*1024} sc1", ("P", sub))
                ops.append(st)
            e(f"v_add_f32 {vr(M)}, {vr(M)}, {vr(T2)}")
            e(f"v_mov_b32 {vr(T2)}, {vr(M)}")
            e(f"v_permlane32_swap_b32 {vr(T2)}, {vr(M)}")
            e(f"v_add_f32 {vr(ST_+1)}, {vr(M)}, {vr(T2)}")

            def stst():
                k(f"s_add_u32 s58, s94, {sub*8192}")
                k("s_mov_b32 exec_hi, 0")
                k.vmem(f"buffer_store_dwordx2 {vr(ST_,2)}, v8, {sr(SWS,4)}, s58 offen sc1", ("P", sub))
                k("s_mov_b32 exec_hi, -1")
            ops.append(stst)
            return ops

        k.wait_vm(("T", 0))
        self.ts(43)
        k("s_barrier")
        for f in range(DIST):
            read(f)
        sm0 = []
        for f in range(96):
            sub, ks = f // 48, f % 48
            nf = f + DIST
            if nf < 96:
                if nf % 16 == 0:
                    self.ts(55 + nf // 16)
                    k.wait_vm(("T", nf // 16))
                    k("s_barrier")
                    self.ts(48 + nf // 16)
                read(nf)
            k.wait_lg(("f", f))
            cc = "0" if ks == 0 else vr(ACC + 16 * sub, 16)
            k(f"v_mfma_f32_32x32x16_bf16 {vr(ACC+16*sub,16)}, {vr(HB+4*ks,4)}, "
              f"{ar(self.A_RING+4*(f%NR),4)}, {cc}")
            if f == 48 + 3:
                sm0 = softmax_ops(0)
            if f == 47:
                self.ts(44)
            if sub == 0:
                if tlate:
                    tlate.pop(0)()
                elif f % self.vstride == 0 and pre:
                    pre.pop(0)()
            else:
                n = self.smf
                while sm0 and n:
                    sm0.pop(0)()
                    n -= 1
                if f % self.vstride1 == 0 and pre and (f < 51 or not sm0):
                    pre.pop(0)()
        while sm0:
            sm0.pop(0)()
        while pre:
            pre.pop(0)()
        self.ts(13)
        for f in softmax_ops(1):
            f()
        for _ in range(min(self.nv1, len(self.vrest))):
            self.vrest.pop(0)()
        k.wait_vm(("P", 0))
        self.publish("s95")
        for _ in range(min(self.nv2, len(self.vrest))):
            self.vrest.pop(0)()

    def phase_d(self):
        k = self.k
        S_B, S_QB, S_DB, S_VO, S_PB, S_XO = self.S_B, self.S_QB, self.S_DB, self.S_VO, self.S_PB, self.S_XO
        GO = self.V_GO
        S_O, S_PS, S_SS = 62, 60, 61
        k(f"s_lshl_b32 s56, {sr(S_B)}, 5")
        k(f"s_lshl_b32 s57, {sr(S_QB)}, 1")
        k("s_add_u32 s56, s56, s57")
        k("s_lshl_b32 s57, s56, 6")
        k(f"s_lshl_b32 s58, {sr(S_W)}, 4")
        k("s_add_u32 s57, s57, s58")
        k("s_lshl_b32 s57, s57, 10")
        k(f"s_add_u32 {sr(S_PS)}, s57, {P_OFF}")
        k("s_lshl_b32 s57, s56, 3")
        k(f"s_lshl_b32 s58, {sr(S_W)}, 1")
        k("s_add_u32 s57, s57, s58")
        k(f"s_lshl_b32 {sr(S_SS)}, s57, 10")
        k(f"s_add_u32 {sr(S_SS)}, {sr(S_SS)}, {ST_OFF}")
        k("s_lshl_b32 s57, s57, 5")
        k(f"s_add_u32 s57, s57, {PF_OFF}")
        k(f"v_lshlrev_b32 v9, 3, {vr(V_LANE)}")
        k("v_add_u32 v9, s57, v9")
        k(f"v_lshrrev_b32 v60, 5, {vr(V_LANE)}")
        k("v_lshl_add_u32 v8, v60, 10, v8")
        WA = 4
        k("v_lshlrev_b32 v61, 1, v60")
        k(f"v_xor_b32 v61, v61, {vr(V_LANE)}")
        k(f"s_mul_i32 s56, {sr(S_W)}, 24576")
        for g in range(4):
            k(f"v_xor_b32 v62, {g<<2}, v61")
            k("v_lshlrev_b32 v62, 4, v62")
            k("v_add_u32 v62, s56, v62")
            k(f"v_add_u32 {vr(WA+g)}, {g*1024}, v62")
        RA = 11
        k(f"v_and_b32 v60, 1, {vr(V_LANE)}")
        k(f"v_lshrrev_b32 v61, 1, {vr(V_LANE)}")
        k("v_and_b32 v61, 3, v61")
        k("v_lshl_add_u32 v62, v60, 5, v14")
        k("v_lshlrev_b32 v63, 2, v61")
        k("v_xor_b32 v62, v62, v63")
        k("v_lshlrev_b32 v63, 1, v60")
        k("v_xor_b32 v62, v62, v63")
        k("v_lshlrev_b32 v62, 4, v62")
        k(f"v_lshl_add_u32 {vr(RA)}, v61, 10, v62")
        k(f"v_add_u32 v15, 49152, {vr(RA)}")
        MLR = 14
        k(f"v_lshlrev_b32 {vr(MLR)}, 5, v14")
        k(f"v_add_u32 {vr(MLR)}, {self.ML_LDS}, {vr(MLR)}")
        GT, XR = 16, 28
        for _ in range(min(self.nv3, len(self.vrest))):
            self.vrest.pop(0)()
        k.wait_vm(("P", 1))
        k("s_add_u32 s95, s95, 256")
        self.publish("s95")
        self.ts(14)
        while self.vrest:
            self.vrest.pop(0)()
        for i in range(12):
            k(f"v_accvgpr_read_b32 {vr(GT+i)}, {ar(self.A_G+i)}")
            k(f"v_accvgpr_read_b32 {vr(XR+i)}, {ar(self.A_G+12+i)}")
        for i in range(12):
            k(f"v_add_f32 {vr(GT+i)}, {vr(GT+i)}, {vr(XR+i)}")
        for i in range(12):
            k(f"v_accvgpr_read_b32 {vr(XR+i)}, {ar(self.A_X+i)}")
        MLW = 63
        k(f"v_and_b32 {vr(MLW)}, 31, {vr(V_LANE)}")
        k(f"v_lshlrev_b32 {vr(MLW)}, 5, {vr(MLW)}")
        k(f"s_lshl_b32 s56, {sr(S_W)}, 3")
        k(f"s_add_u32 s56, s56, {self.ML_LDS}")
        k(f"v_add_u32 {vr(MLW)}, s56, {vr(MLW)}")
        PR = [64, 128]
        SR_ = [40, 48]

        def p_loads(sub):
            for s4 in range(4):
                k(f"s_add_u32 {sr(S_O)}, {sr(S_PS)}, {sub*65536 + s4*4096}")
                for i in range(4):
                    k.vmem(f"buffer_load_dwordx4 {vr(PR[sub]+4*(4*s4+i),4)}, {vr(V_L16)}, {sr(SWS,4)}, {sr(S_O)} "
                           f"offen offset:{i*1024} sc1", ("P", sub))
            k(f"s_add_u32 {sr(S_O)}, {sr(S_SS)}, {sub*8192}")
            for pw in range(4):
                k.vmem(f"buffer_load_dwordx2 {vr(SR_[sub]+2*pw,2)}, v8, {sr(SWS,4)}, {sr(S_O)} offen "
                       f"offset:{pw*256} sc1", ("S", sub))
        self.spin_at(12, 9, "s_mov_b64 exec, 0xff")
        p_loads(0)
        self.spin_at(12, 9, "s_mov_b64 exec, 0xff", off=256)
        p_loads(1)
        self.ts(12)
        F = [56, 58]

        def factor_ops(sub):
            S = SR_[sub]
            f0, f1 = F[sub], F[sub] + 1
            ops = []

            def e(line):
                ops.append(lambda: k(line))
            ops.append(lambda: k.wait_vm(("S", sub)))
            e(f"v_add_f32 {vr(S+1)}, {vr(S+1)}, {vr(S+3)}")
            e(f"v_add_f32 {vr(S+5)}, {vr(S+5)}, {vr(S+7)}")
            e(f"v_mov_b32 {vr(S+2)}, {vr(S)}")
            e(f"v_add_f32 {vr(S+1)}, {vr(S+1)}, {vr(S+5)}")
            e(f"v_permlane32_swap_b32 {vr(S+2)}, {vr(S)}")
            e(f"v_mov_b32 {vr(S+3)}, {vr(S+1)}")
            e(f"v_max_f32 {vr(S+4)}, {vr(S+2)}, {vr(S)}")
            e(f"v_permlane32_swap_b32 {vr(S+3)}, {vr(S+1)}")
            e(f"v_sub_f32 {vr(f0)}, {vr(S+2)}, {vr(S+4)}")
            e(f"v_sub_f32 {vr(f1)}, {vr(S)}, {vr(S+4)}")
            e(f"v_exp_f32 {vr(f0)}, {vr(f0)}")
            e(f"v_exp_f32 {vr(f1)}, {vr(f1)}")
            e(f"s_nop 0")
            e(f"v_mul_f32 {vr(S+5)}, {vr(f0)}, {vr(S+3)}")
            e(f"v_fmac_f32 {vr(S+5)}, {vr(f1)}, {vr(S+1)}")
            ops.append(lambda: k.ds(f"ds_write_b64 {vr(MLW)}, {vr(S+4,2)} offset:{sub*1024}", ("ml", sub)))
            return ops

        TMP = [[192, 208], [224, 240]]

        def scale_ops(sub, j):
            tile = 3 * sub + j
            t0, t1 = TMP[tile % 2]
            ops = []
            for g in range(4):
                for x in range(4 * g, 4 * g + 4):
                    ops.append(lambda x=x: k(f"v_mul_f32 {vr(t0+x)}, {vr(F[sub])}, {vr(t0+x)}"))
                for x in range(4 * g, 4 * g + 4):
                    ops.append(lambda x=x: k(f"v_fmac_f32 {vr(t0+x)}, {vr(F[sub]+1)}, {vr(t1+x)}"))
                ops.append(lambda g=g: k.ds(f"ds_write_b128 {vr(WA+g)}, {vr(t0+4*g,4)} offset:{tile*4096}",
                                            ("img", sub)))
            return ops

        def fin_ops(sub):
            ops = []

            def e(line):
                ops.append(lambda: k(line))
            C = SR_[sub]
            ML = 96
            for i in range(2):
                ops.append(lambda i=i: k.ds(f"ds_read_b128 {vr(ML+4*i,4)}, {vr(MLR)} offset:{sub*1024+16*i}",
                                            ("mlr", sub)))
            RB = [64, 80]

            def reads(j):
                R = RB[j % 2]
                tile = 3 * sub + j
                for src in range(4):
                    ops.append(lambda src=src: k.ds(
                        f"ds_read_b128 {vr(R+4*src,4)}, {vr(RA if src < 2 else 15)} "
                        f"offset:{(src%2)*24576+tile*4096}", ("fr", sub, j)))
            reads(0)
            ops.append(lambda: k.wait_lg(("mlr", sub)))
            e(f"v_max3_f32 {vr(C+4)}, {vr(ML)}, {vr(ML+2)}, {vr(ML+4)}")
            e(f"v_max_f32 {vr(C+4)}, {vr(C+4)}, {vr(ML+6)}")
            for w in range(4):
                e(f"v_sub_f32 {vr(C+w)}, {vr(ML+2*w)}, {vr(C+4)}")
            for w in range(4):
                e(f"v_exp_f32 {vr(C+w)}, {vr(C+w)}")
            e("s_nop 0")
            e(f"v_mul_f32 {vr(C+5)}, {vr(C)}, {vr(ML+1)}")
            for w in range(1, 4):
                e(f"v_fmac_f32 {vr(C+5)}, {vr(C+w)}, {vr(ML+2*w+1)}")
            e(f"v_rcp_f32 {vr(C+5)}, {vr(C+5)}")
            e("s_nop 0")
            for w in range(4):
                e(f"v_mul_f32 {vr(C+w)}, {vr(C+w)}, {vr(C+5)}")
            for j in range(3):
                R = RB[j % 2]
                tile = 3 * sub + j
                if j + 1 < 3:
                    reads(j + 1)
                ops.append(lambda j=j: k.wait_lg(("fr", sub, j)))
                for x in range(4):
                    e(f"v_mul_f32 {vr(R+x)}, {vr(C)}, {vr(R+x)}")
                for src in range(1, 4):
                    for x in range(4):
                        e(f"v_fmac_f32 {vr(R+x)}, {vr(C+src)}, {vr(R+4*src+x)}")
                xr = XR + 2 * tile
                e(f"v_lshlrev_b32 {vr(R+4)}, 16, {vr(xr)}")
                e(f"v_and_b32 {vr(R+5)}, {sr(S_MASK)}, {vr(xr)}")
                e(f"v_lshlrev_b32 {vr(R+6)}, 16, {vr(xr+1)}")
                e(f"v_and_b32 {vr(R+7)}, {sr(S_MASK)}, {vr(xr+1)}")
                for x in range(4):
                    e(f"v_fmac_f32 {vr(R+4+x)}, {vr(GT+4*j+x)}, {vr(R+x)}")
                e(f"v_cvt_pk_bf16_f32 {vr(xr)}, {vr(R+4)}, {vr(R+5)}")
                e(f"v_cvt_pk_bf16_f32 {vr(xr+1)}, {vr(R+6)}, {vr(R+7)}")

                def st(j=j, xr=xr):
                    if j == 0:
                        k(f"s_add_u32 s56, {sr(S_XO)}, {sub*32*1536}")
                    k.vmem(f"buffer_store_dwordx2 {vr(xr,2)}, {vr(GO)}, {sr(SOUT,4)}, s56 offen offset:{j*64}"
                           f"{self.out_policy}", "out")
                ops.append(st)
            return ops

        q_scale, q_other = [], factor_ops(0)
        groups = [(sub, j) for sub in range(2) for j in range(3)]
        k.wait_vm(("P", 0))
        for gi, (sub, j) in enumerate(groups):
            t0, t1 = TMP[gi % 2]
            if (sub, j) == (1, 0):
                k.wait_vm(("P", 1))
            for n in range(16):
                t, s = n % 2, n // 2
                ss = 8 * t + s
                tmp = (t0, t1)[t]
                cc = "0" if s == 0 else vr(tmp, 16)
                k(f"v_mfma_f32_32x32x16_bf16 {vr(tmp,16)}, {ar((j*16+ss)*4,4)}, {vr(PR[sub]+4*ss,4)}, {cc}")
                if n == 3:
                    if gi >= 1:
                        q_scale += scale_ops(*groups[gi - 1])
                    if gi == 3:
                        def bar0():
                            k.wait_lg(("img", 0))
                            k("s_barrier")
                        q_other.append(bar0)
                        q_other += fin_ops(0)
                if gi == 2 and n == 12:
                    q_other += factor_ops(1)
                m = 3 if gi < 3 else 5
                while (q_scale or q_other) and m:
                    (q_scale or q_other).pop(0)()
                    m -= 1
            while q_scale:
                q_scale.pop(0)()
            if gi in (0, 2):
                while q_other:
                    q_other.pop(0)()
        while q_other:
            q_other.pop(0)()
        for f in scale_ops(1, 2):
            f()
        k.wait_lg_all()
        k("s_barrier")
        for f in fin_ops(1):
            f()

    def build(self):
        k = self.k
        self.prologue()
        la, lw, lb = "L_A_gemv", "L_A_w", "L_A_done"
        k(f"s_cmp_ge_u32 {sr(S_IDX)}, 24")
        k(f"s_cbranch_scc1 {la}")
        if "noln" not in self.opts:
            self.x_loads()
        self.srd(SQKV, 8, 768 * 2304 * 2, bias=4096)
        sv = list(k.vm)
        k(f"s_cmp_ge_u32 {sr(S_XCD)}, 4")
        k(f"s_cbranch_scc1 {lw}")
        self.phase_a_gemm(0)
        k(f"s_branch {lb}")
        k.label(lw)
        k.reset_counts()
        k.vm = list(sv)
        self.srd(SWO, 10, 768 * 768 * 2, bias=4096)
        self.phase_a_gemm(1)
        k(f"s_branch {lb}")
        k.label(la)
        k.reset_counts()
        if "nogemv" in self.opts:
            k("s_branch L_fin")
        self.srd(SC, 6, 2 * 768 * 2)
        self.srd(SWM, 12, 768 * 4608 * 2)
        self.phase_a_gemv()
        k.label(lb)
        k.reset_counts()
        self.srd(SOUT, 14, 2 * 1024 * 768 * 2)
        if self.stop_after == "A":
            k("s_waitcnt vmcnt(0)")
            np_ = k.newlabel("np")
            k(f"s_cmp_eq_u32 {sr(S_PEND)}, 0")
            k(f"s_cbranch_scc1 {np_}")
            self.publish(sr(S_PEND))
            k.label(np_)
        else:
            self.phase_b_pre()
            self.phase_b()
            if self.stop_after == "B":
                k.wait_vm_all()
                self.publish(sr(S_PEND))
                self.ts(10)
            else:
                self.phase_c()
                if self.stop_after != "C":
                    self.phase_d()
                else:
                    k.wait_vm_all()
                    k("s_add_u32 s95, s95, 256")
                    self.publish("s95")
        k.label("L_fin")
        k.wait_vm_all()
        self.ts(15)
        self.ts_dump()
        k.label("L_end")
        k("s_endpgm")
        k.label("L_codeend")
        body = k.finalize()
        hdr = f"""; DiT adaLN attention block: persistent single-launch kernel (generated by work/gen2.py)
; @launch grid=(256,1,1) block=(256,1,1) lds=163840
.amdgcn_target "amdgcn-amd-amdhsa--gfx950"
.text
.globl {NAME}_kernel
.p2align 8
.type {NAME}_kernel,@function
{NAME}_kernel:
"""
        ftr = f""".section .rodata,"a"
.p2align 6
.amdhsa_kernel {NAME}_kernel
  .amdhsa_next_free_vgpr 512
  .amdhsa_next_free_sgpr 102
  .amdhsa_accum_offset 256
  .amdhsa_group_segment_fixed_size 0
  .amdhsa_kernarg_size 64
  .amdhsa_user_sgpr_count 2
  .amdhsa_user_sgpr_kernarg_segment_ptr 1
  .amdhsa_system_sgpr_workgroup_id_x 1
  .amdhsa_float_denorm_mode_32 3
.end_amdhsa_kernel
"""
        return hdr + body + ftr


if __name__ == "__main__":
    import argparse
    ap = argparse.ArgumentParser()
    ap.add_argument("-o", default=f"cdna_kernels/{NAME}.s")
    ap.add_argument("--stop", default=None)
    ap.add_argument("--ts", default="")
    ap.add_argument("--opt", action="append", default=[])
    a = ap.parse_args()
    g = Gen(stop_after=a.stop, ts=a.ts, opts=a.opt)
    s = g.build()
    open(a.o, "w").write(s)
    print("wrote", a.o, len(s), "bytes;", g.k.nops_inserted, "nop sites,", g.k.nop_states, "states")
```
